```python
import torch

def _softmax(x, axis=-1):
    return torch.softmax(x, dim=axis)
def _gelu(x):
    return torch.nn.functional.gelu(x, approximate="tanh")
def _silu(x):
    return torch.nn.functional.silu(x)
def _sigmoid(x):
    return torch.sigmoid(x)
def _layernorm(x, axis=-1, eps=1e-5):
    m = x.mean(dim=axis, keepdim=True)
    v = x.var(dim=axis, keepdim=True, unbiased=False)
    return (x - m) / torch.sqrt(v + eps)
def _scatter_add(tgt, idx, src, axis=0):
    return tgt.clone().index_add_(axis, idx, src)
def _segment_sum(src, seg, n):
    out = torch.zeros((n,) + src.shape[1:], dtype=src.dtype)
    return out.index_add_(0, seg, src)
def _pad(x, pw):
    flat = tuple(v for pair in reversed(pw) for v in pair)
    return torch.nn.functional.pad(x, flat)

kernel_name = 'gated_mix__grouped_kv_mqa__sliding_local_dilated__prompt'

def setup_inputs():

    _w = (lambda a: (lambda t: t.to(torch.bfloat16) if t.is_floating_point() else t)(torch.as_tensor(a)))
    def _A_setup():
        B, S, D, H = 1, 2048, 448, 16
        Dh = D // H
        return {
            "x": _w((lambda *s: torch.randn(*s, dtype=torch.bfloat16) * 0.05)(B, S, D)),
            "wq": _w((lambda *s: torch.randn(*s, dtype=torch.bfloat16) * 1.6)(D, H * Dh)),
            "wk": _w((lambda *s: torch.randn(*s, dtype=torch.bfloat16) * 1.6)(D, Dh)),
            "wv": _w((lambda *s: torch.randn(*s, dtype=torch.bfloat16) * 0.2)(D, Dh)),
            "wo": _w((lambda *s: torch.randn(*s, dtype=torch.bfloat16) * 0.2)(H * Dh, D)),
        }
    _A_in = _A_setup()

    def _B_setup():
        B, S, D = 1, 2048, 448
        return {
            "x": _w((lambda *s: torch.randn(*s, dtype=torch.bfloat16) * 0.05)(B, S, D)),
            "wqkv": _w((lambda *s: torch.randn(*s, dtype=torch.bfloat16) * 0.8)(D, 3 * D)),
            "wo": _w((lambda *s: torch.randn(*s, dtype=torch.bfloat16) * 0.05)(D, D)),
        }
    _B_in = _B_setup()

    return {
        "A_x": _A_in["x"],
        "A_wq": _A_in["wq"],
        "A_wk": _A_in["wk"],
        "A_wv": _A_in["wv"],
        "A_wo": _A_in["wo"],
        "B_x": _B_in["x"],
        "B_wqkv": _B_in["wqkv"],
        "B_wo": _B_in["wo"],
        "gate_w": _w((lambda *s: torch.randn(*s, dtype=torch.bfloat16) * 0.05)(448) * 16.0),
    }

def reference(A_x, A_wq, A_wk, A_wv, A_wo, B_x, B_wqkv, B_wo, gate_w):
    def _A_ref(x, wq, wk, wv, wo):
        B, S, D = x.shape
        H = 16
        Dh = D // H
        q = (lambda x, *d: x.permute(*d))((x @ wq).reshape(B, S, H, Dh), 0, 2, 1, 3)
        k = x @ wk
        v = x @ wv
        scores = torch.einsum("bhqd,bkd->bhqk", q, k) * (Dh ** -0.5)
        p = _softmax(scores, axis=-1)
        o = torch.einsum("bhqk,bkd->bhqd", p, v)
        return (lambda x, *d: x.permute(*d))(o, 0, 2, 1, 3).reshape(B, S, H * Dh) @ wo

    def _B_ref(x, wqkv, wo):
        B, S, D = x.shape
        H = 16; Dh = D // H
        W, dil = 8, 2
        qkv = (lambda x, *d: x.permute(*d))((x @ wqkv).reshape(B, S, 3, H, Dh), 2, 0, 3, 1, 4)
        q, k, v = qkv[0], qkv[1], qkv[2]
        scale = Dh ** -0.5
        pos = torch.arange(S)
        off = torch.arange(W) * dil
        idx = pos[:, None] - off[None, :]
        mask = idx >= 0
        idx_c = torch.where(mask, idx, 0).reshape(-1)
        kg = k[:, :, idx_c, :].reshape(B, H, S, W, Dh)
        vg = v[:, :, idx_c, :].reshape(B, H, S, W, Dh)
        logits = torch.einsum("bhsd,bhswd->bhsw", q, kg) * scale
        logits = torch.where(mask[None, None, :, :], logits, -1e9)
        attn = _softmax(logits, axis=-1)
        o = torch.einsum("bhsw,bhswd->bhsd", attn, vg)
        return (lambda x, *d: x.permute(*d))(o, 0, 2, 1, 3).reshape(B, S, D) @ wo

    x = A_x
    g = _sigmoid((x * gate_w).sum(-1, keepdims=True))
    a = _A_ref(x, A_wq, A_wk, A_wv, A_wo)
    b = _B_ref(x, B_wqkv, B_wo)
    return g * a + (1 - g) * b
```

```python
import sys
NAME = "gated_mix__grouped_kv_mqa__sliding_local_dilated__prompt"
WS_QA, WS_KA, WS_VA, WS_QKB, WS_VBT, WS_OM = 0x0, 0x200000, 0x220000, 0x240000, 0x5C0000, 0x780000
WS_G = 0xB00000
WS_SIZE = 0xB02000
L = []
def e(s): L.append("    " + s)
def lab(s): L.append(s + ":")

def srd(d, lo, hi, size):
    e(f"s_mov_b32 s{d}, s{lo}"); e(f"s_and_b32 s{d+1}, s{hi}, 0xffff")
    e(f"s_mov_b32 s{d+2}, {size}"); e(f"s_mov_b32 s{d+3}, 0x00020000")

def kernel_head(name):
    L.append(f".globl {name}"); L.append(".p2align 8"); L.append(f".type {name},@function"); lab(name)

def gen_k1():
    kernel_head("k1_kernel")
    e("s_lshr_b32 s3, s2, 4"); e("s_and_b32 s33, s2, 15")
    e("s_cmp_ge_u32 s3, 15"); e("s_cbranch_scc1 K1_end")
    e("s_load_dwordx8 s[36:43], s[0:1], 0")
    e("s_load_dwordx2 s[44:45], s[0:1], 48")
    e("s_load_dwordx2 s[46:47], s[0:1], 88")
    e("v_lshrrev_b32 v1, 6, v0")
    e("v_and_b32 v2, 63, v0")
    e("v_and_b32 v3, 31, v0")
    e("v_bfe_u32 v4, v0, 5, 1")
    e("s_waitcnt lgkmcnt(0)")
    srd(8, 36, 37, 2048*448*2)
    srd(16, 46, 47, WS_SIZE)
    e("s_lshl_b32 s34, s33, 7")
    e("v_lshl_add_u32 v5, v1, 5, v3"); e("v_add_u32 v5, s34, v5")
    e("s_movk_i32 s35, 896")
    e("v_mul_lo_u32 v6, v5, s35"); e("v_lshl_add_u32 v6, v4, 4, v6")
    for ks in range(28):
        e(f"buffer_load_dwordx4 v[{16+4*ks}:{19+4*ks}], v6, s[8:11], 0 offen offset:{32*ks}")
    e("v_bfe_u32 v8, v2, 4, 1")
    e("v_bfe_u32 v9, v2, 2, 2")
    e("v_and_b32 v10, 3, v2")
    e("v_lshl_add_u32 v7, v4, 3, v9"); e("v_lshlrev_b32 v7, 6, v7")
    e("v_lshl_add_u32 v7, v8, 5, v7"); e("v_lshl_add_u32 v7, v10, 3, v7")
    e("v_lshlrev_b32 v11, 4, v0")
    e("v_lshlrev_b32 v12, 3, v0")
    e("v_add_u32 v224, 57344, v7"); e("v_add_u32 v225, 57344, v11"); e("v_add_u32 v226, 57344, v12")
    e("v_cmp_le_u32 s[30:31], 32, v2")
    for nc in range(15):
        e(f"s_cmp_eq_u32 s3, {nc}"); e(f"s_cbranch_scc1 K1_v{nc}")
    e("s_branch K1_end")
    for nc in range(15):
        lab(f"K1_v{nc}")
        if nc < 3: blocks = [("QA", 4*nc+b) for b in range(4)]
        elif nc == 3: blocks = [("QA", 12), ("QA", 13), ("KA", 0), ("VA", 0)]
        elif nc < 11: blocks = [("QKB", 4*(nc-4)+b) for b in range(4)]
        elif nc < 14: blocks = [("VB", 4*(nc-11)+b) for b in range(4)]
        else: blocks = [("VB", 12), ("VB", 13)]
        for bi, (ty, idx) in enumerate(blocks):
            base = bi*28672
            if ty in ("QA", "QKB", "VB"):
                if ty == "QA": srd(12, 38, 39, 448*448*2); stride, col = 896, idx*32
                elif ty == "QKB": srd(12, 44, 45, 448*1344*2); stride, col = 2688, idx*32
                else: srd(12, 44, 45, 448*1344*2); stride, col = 2688, 896+idx*32
                e(f"s_movk_i32 s35, {stride}")
                e("v_lshrrev_b32 v13, 2, v0"); e("v_mul_lo_u32 v13, v13, s35")
                e("v_and_b32 v14, 3, v0"); e("v_lshl_add_u32 v13, v14, 4, v13")
                for r in range(7):
                    e(f"s_mov_b32 s35, {col*2 + r*64*stride}")
                    e(f"buffer_load_dwordx4 v[{128+4*r}:{131+4*r}], v13, s[12:15], s35 offen")
                for r in range(7):
                    e(f"s_waitcnt vmcnt({6-r})")
                    e(f"ds_write_b128 {'v11' if bi<2 else 'v225'}, v[{128+4*r}:{131+4*r}] offset:{(base%57344) + r*4096}")
            else:
                if ty == "KA": srd(12, 40, 41, 448*28*2)
                else: srd(12, 42, 43, 448*28*2)
                e("v_lshrrev_b32 v13, 3, v0"); e("v_mul_u32_u24 v13, 56, v13")
                e("v_and_b32 v14, 7, v0"); e("v_lshl_add_u32 v13, v14, 3, v13")
                e("v_mov_b32 v15, 0x7fffff00")
                e("v_cmp_eq_u32 vcc, 7, v14"); e("s_nop 1"); e("v_cndmask_b32 v13, v13, v15, vcc")
                for r in range(14):
                    e(f"s_movk_i32 s35, {r*32*56}")
                    e(f"buffer_load_dwordx2 v[{128+2*r}:{129+2*r}], v13, s[12:15], s35 offen")
                if ty == "KA":
                    e("s_load_dwordx2 s[48:49], s[0:1], 64"); e("s_waitcnt lgkmcnt(0)")
                    srd(20, 48, 49, 896)
                    e("v_lshrrev_b32 v15, 3, v0"); e("v_lshlrev_b32 v15, 1, v15")
                    e("s_and_saveexec_b64 s[50:51], vcc")
                    for r in range(14):
                        e(f"buffer_load_ushort v{128+2*r}, v15, s[20:23], 0 offen offset:{r*64}")
                    e("s_mov_b64 exec, s[50:51]")
                    e("s_waitcnt vmcnt(0)")
                for r in range(14):
                    e(f"s_waitcnt vmcnt({13-r})")
                    e(f"ds_write_b64 {'v12' if bi<2 else 'v226'}, v[{128+2*r}:{129+2*r}] offset:{(base%57344) + r*2048}")
        e("s_waitcnt lgkmcnt(0)"); e("s_barrier")
        nb = len(blocks)
        def rd(ks, buf):
            for bi in range(nb):
                r0 = 192 + buf*16 + bi*4
                ar = 'v7' if bi<2 else 'v224'
                e(f"ds_read_b64_tr_b16 v[{r0}:{r0+1}], {ar} offset:{(bi%2)*28672 + ks*1024}")
                e(f"ds_read_b64_tr_b16 v[{r0+2}:{r0+3}], {ar} offset:{(bi%2)*28672 + ks*1024 + 256}")
        rd(0, 0)
        for ks in range(28):
            if ks < 27:
                rd(ks+1, (ks+1) & 1); e(f"s_waitcnt lgkmcnt({2*nb})")
            else: e("s_waitcnt lgkmcnt(0)")
            for bi, (ty, idx) in enumerate(blocks):
                w = f"v[{192+(ks&1)*16+bi*4}:{195+(ks&1)*16+bi*4}]"; x = f"v[{16+4*ks}:{19+4*ks}]"
                acc = f"v[{128+16*bi}:{143+16*bi}]"
                c = acc if ks else "0"
                if ty in ("VA", "VB"): e(f"v_mfma_f32_32x32x16_bf16 {acc}, {x}, {w}, {c}")
                else: e(f"v_mfma_f32_32x32x16_bf16 {acc}, {w}, {x}, {c}")
        e("s_nop 15"); e("s_nop 3")
        for bi, (ty, idx) in enumerate(blocks):
            a = 128+16*bi
            if ty == "QA":
                e("v_lshrrev_b32 v13, 1, v5"); e("v_lshlrev_b32 v13, 11, v13")
                e("v_and_b32 v14, 1, v5"); e("v_lshl_add_u32 v13, v14, 8, v13")
            elif ty == "KA":
                e("v_lshrrev_b32 v13, 5, v5"); e("v_lshlrev_b32 v13, 11, v13")
                e("v_lshl_add_u32 v13, v3, 4, v13"); e("v_lshl_add_u32 v13, v4, 3, v13")
                e(f"v_add_u32 v13, {WS_KA}, v13")
                e(f"v_lshlrev_b32 v14, 2, v5"); e(f"v_add_u32 v14, {WS_G}, v14")
                e("s_mov_b64 s[50:51], exec"); e("s_mov_b64 exec, s[30:31]")
                e(f"buffer_store_dword v{a+12}, v14, s[16:19], 0 offen")
                e(f"v_mov_b32 v{a+12}, 0")
                e("s_mov_b64 exec, s[50:51]")
            elif ty == "VA":
                e("v_lshrrev_b32 v13, 5, v5"); e("v_lshlrev_b32 v13, 11, v13")
                e("v_lshl_add_u32 v13, v2, 4, v13")
                e(f"v_add_u32 v13, {WS_VA}, v13")
                e("v_cmp_eq_u32 vcc, 28, v3"); e("s_nop 1")
                for r in range(16): e(f"v_cndmask_b32 v{a+r}, v{a+r}, 1.0, vcc")
            elif ty == "QKB":
                e("s_movk_i32 s35, 1792"); e("v_mul_lo_u32 v13, v5, s35"); e("v_lshl_add_u32 v13, v4, 3, v13")
                e(f"v_add_u32 v13, {WS_QKB + idx*64}, v13")
            else:
                e(f"v_add_u32 v13, {idx*32}, v3"); e("v_lshlrev_b32 v13, 12, v13")
                e("v_sub_u32 v14, v5, v3"); e("v_lshl_add_u32 v13, v14, 1, v13"); e("v_lshl_add_u32 v13, v4, 3, v13")
                e(f"v_add_u32 v13, {WS_VBT}, v13")
            for G in range(4):
                e(f"v_cvt_pk_bf16_f32 v{a+4*G}, v{a+4*G}, v{a+4*G+1}")
                e(f"v_cvt_pk_bf16_f32 v{a+4*G+1}, v{a+4*G+2}, v{a+4*G+3}")
                if ty == "QA":
                    def cst(n):
                        h, d = n//28, n % 28
                        return (d//16)*1024 + ((d//8) % 2)*512 + h*16 + (d % 8)*2
                    n = idx*32 + 8*G
                    e(f"v_mov_b32 v14, {cst(n)}"); e(f"v_mov_b32 v15, {cst(n+4)}")
                    e("v_cndmask_b32 v14, v14, v15, s[30:31]"); e("v_add_u32 v14, v14, v13")
                    e(f"buffer_store_dwordx2 v[{a+4*G}:{a+4*G+1}], v14, s[16:19], 0 offen")
                else:
                    off = {"KA": (G//2)*1024 + (G % 2)*512, "VA": (G//2)*1024 + (G % 2)*8, "QKB": 16*G, "VB": 16*G}[ty]
                    e(f"buffer_store_dwordx2 v[{a+4*G}:{a+4*G+1}], v13, s[16:19], 0 offen offset:{off}")
        e("s_endpgm")
    lab("K1_end"); e("s_endpgm")

import math
CSC = 28 ** -0.5 * math.log2(math.e)
import struct
def fbits(f): return "0x%08x" % struct.unpack("<I", struct.pack("<f", f))[0]
def halfmax(v, t):
    e(f"v_mov_b32 v{t}, v{v}"); e("s_nop 1"); e(f"v_permlane32_swap_b32 v{v}, v{t}"); e("s_nop 1")
def gen_k2():
    kernel_head("k2_kernel")
    e("s_cmp_ge_u32 s2, 256"); e("s_cbranch_scc1 K2_end")
    e("s_load_dwordx2 s[46:47], s[0:1], 88")
    e("v_lshrrev_b32 v1, 6, v0"); e("v_and_b32 v2, 63, v0"); e("v_and_b32 v3, 31, v0"); e("v_bfe_u32 v4, v0, 5, 1")
    e("s_nop 0"); e("v_readfirstlane_b32 s4, v1")
    e("s_waitcnt lgkmcnt(0)")
    srd(16, 46, 47, WS_SIZE)
    e("s_and_b32 s5, s4, 3"); e("s_lshr_b32 s6, s4, 2")
    e("s_lshl_b32 s7, s2, 2"); e("s_add_u32 s7, s7, s5")
    e(f"s_mov_b32 s3, {fbits(CSC)}")
    e("v_cmp_le_u32 s[30:31], 32, v2")
    e("v_lshlrev_b32 v5, 4, v2")
    e("v_lshlrev_b32 v6, 4, v0")
    e("s_lshl_b32 s8, s7, 11")
    e("buffer_load_dwordx4 v[8:11], v5, s[16:19], s8 offen")
    e("buffer_load_dwordx4 v[12:15], v5, s[16:19], s8 offen offset:1024")
    def stage_load(c):
        for p in range(4):
            off = (WS_KA if p % 2 == 0 else WS_VA) + (p//2)*65536 + c*8192
            e(f"s_mov_b32 s9, {off}")
            e(f"buffer_load_dwordx4 v[{212+4*p}:{215+4*p}], v6, s[16:19], s9 offen")
    def stage_write(buf):
        for p in range(4):
            e(f"ds_write_b128 v6, v[{212+4*p}:{215+4*p}] offset:{buf*32768 + p*8192}")
    stage_load(0)
    e("s_waitcnt vmcnt(0)")
    e("v_cndmask_b32 v14, v14, 0, s[30:31]"); e("v_cndmask_b32 v15, v15, 0, s[30:31]")
    stage_write(0)
    for r in range(16): e(f"v_mov_b32 v{192+r}, 0")
    e("v_mov_b32 v208, 0xff800000")
    e("s_lshl_b32 s10, s6, 14"); e("v_add_u32 v7, s10, v5")
    e("s_waitcnt lgkmcnt(0)"); e("s_barrier")
    for c in range(8):
        buf = c & 1
        if c < 7: stage_load(c+1)
        for t in range(4):
            for st in range(2):
                e(f"ds_read_b128 v[{96+8*t+4*st}:{99+8*t+4*st}], v7 offset:{buf*32768 + t*2048 + st*1024}")
        for t in range(4):
            for st in range(2):
                e(f"ds_read_b128 v[{128+8*t+4*st}:{131+8*t+4*st}], v7 offset:{buf*32768 + 8192 + t*2048 + st*1024}")
        for t in range(4):
            e(f"s_waitcnt lgkmcnt({14-2*t})")
            S = f"v[{32+16*t}:{47+16*t}]"
            e(f"v_mfma_f32_32x32x16_bf16 {S}, v[{96+8*t}:{99+8*t}], v[8:11], 0")
            e(f"v_mfma_f32_32x32x16_bf16 {S}, v[{100+8*t}:{103+8*t}], v[12:15], {S}")
        e("s_nop 15")
        e("v_max3_f32 v209, v32, v33, v34")
        for r in range(35, 95, 2): e(f"v_max3_f32 v209, v209, v{r}, v{r+1}")
        e("v_max_f32 v209, v209, v95")
        halfmax(209, 210)
        e("v_max3_f32 v209, v209, v210, v208")
        e("v_sub_f32 v210, v208, v209"); e("v_mul_f32 v210, s3, v210"); e("v_exp_f32 v210, v210")
        e("v_mov_b32 v208, v209")
        e("v_mul_f32 v209, s3, v209")
        for r in range(16): e(f"v_mul_f32 v{192+r}, v{192+r}, v210")
        for r in range(32, 96):
            e(f"v_fma_f32 v{r}, v{r}, s3, -v209")
        for r in range(32, 96): e(f"v_exp_f32 v{r}, v{r}")
        e("s_nop 0")
        for r in range(32): e(f"v_cvt_pk_bf16_f32 v{160+r}, v{32+2*r}, v{33+2*r}")
        e("s_waitcnt lgkmcnt(0)"); e("s_nop 1")
        for t in range(4):
            for st in range(2):
                e(f"v_mfma_f32_32x32x16_bf16 v[192:207], v[{128+8*t+4*st}:{131+8*t+4*st}], v[{160+8*t+4*st}:{163+8*t+4*st}], v[192:207]")
        if c < 7:
            e("s_waitcnt vmcnt(0)"); stage_write(buf ^ 1)
        e("s_waitcnt lgkmcnt(0)"); e("s_barrier")
    e("s_nop 15")
    e("s_cmp_ge_u32 s4, 4"); e("s_cbranch_scc1 K2_hi")
    e("s_barrier")
    e("s_mul_i32 s10, s5, 4352"); e("v_lshlrev_b32 v7, 2, v2"); e("v_add_u32 v7, s10, v7")
    e("ds_read_b32 v32, v7 offset:0")
    for r in range(16): e(f"ds_read_b32 v{33+r}, v7 offset:{256*(r+1)}")
    e("s_lshl_b32 s10, s7, 1"); e("v_lshrrev_b32 v50, 4, v3"); e("v_add_u32 v50, s10, v50")
    e(f"v_lshlrev_b32 v51, 2, v50"); e(f"v_add_u32 v51, {WS_G}, v51")
    e("buffer_load_dword v52, v51, s[16:19], 0 offen")
    e("s_waitcnt lgkmcnt(0) vmcnt(0)")
    e("v_max_f32 v53, v208, v32")
    e("v_sub_f32 v54, v208, v53"); e("v_sub_f32 v55, v32, v53")
    e("v_mul_f32 v54, s3, v54"); e("v_mul_f32 v55, s3, v55"); e("v_exp_f32 v54, v54"); e("v_exp_f32 v55, v55"); e("s_nop 0")
    for r in range(16):
        e(f"v_mul_f32 v{192+r}, v{192+r}, v54"); e(f"v_fmac_f32 v{192+r}, v{33+r}, v55")
    e("v_mov_b32 v56, v204"); halfmax(56, 57)
    e(f"v_mul_f32 v52, {fbits(-math.log2(math.e))}, v52"); e("v_exp_f32 v52, v52"); e("s_nop 0")
    e("v_add_f32 v52, 1.0, v52"); e("v_mul_f32 v52, v52, v57"); e("v_rcp_f32 v52, v52"); e("s_nop 0")
    for r in range(16): e(f"v_mul_f32 v{192+r}, v{192+r}, v52")
    e("s_movk_i32 s10, 1792"); e("v_mul_lo_u32 v58, v50, s10")
    e("v_and_b32 v59, 15, v3"); e("v_mul_u32_u24 v59, 56, v59"); e("v_add_u32 v58, v58, v59")
    e("v_lshl_add_u32 v58, v4, 3, v58"); e(f"v_add_u32 v58, {WS_OM}, v58")
    for G in range(4):
        e(f"v_cvt_pk_bf16_f32 v{192+4*G}, v{192+4*G}, v{193+4*G}")
        e(f"v_cvt_pk_bf16_f32 v{193+4*G}, v{194+4*G}, v{195+4*G}")
        if G == 3: e("s_andn2_b64 exec, exec, s[30:31]")
        e(f"buffer_store_dwordx2 v[{192+4*G}:{193+4*G}], v58, s[16:19], 0 offen offset:{16*G}")
    e("s_endpgm")
    lab("K2_hi")
    e("s_mul_i32 s10, s5, 4352"); e("v_lshlrev_b32 v7, 2, v2"); e("v_add_u32 v7, s10, v7")
    e("ds_write_b32 v7, v208 offset:0")
    for r in range(16): e(f"ds_write_b32 v7, v{192+r} offset:{256*(r+1)}")
    e("s_waitcnt lgkmcnt(0)"); e("s_barrier")
    e("s_and_b32 s10, s2, 3"); e("s_lshl_b32 s10, s10, 2"); e("s_add_u32 s10, s10, s5")
    e("s_lshr_b32 s11, s2, 2"); e("s_lshl_b32 s12, s11, 5")
    e("s_mul_i32 s13, s10, 56")
    e("v_add_u32 v230, s12, v3")
    e("s_movk_i32 s14, 1792"); e("v_mul_lo_u32 v231, v230, s14"); e("v_lshl_add_u32 v231, v4, 4, v231")
    e(f"s_add_u32 s15, s13, {WS_QKB}")
    e("buffer_load_dwordx4 v[8:11], v231, s[16:19], s15 offen")
    e("buffer_load_dwordx4 v[12:15], v231, s[16:19], s15 offen offset:32")
    e(f"s_add_u32 s15, s13, {WS_QKB + 896 - 32*1792}")
    e("buffer_load_dwordx4 v[96:99], v231, s[16:19], s15 offen")
    e("buffer_load_dwordx4 v[100:103], v231, s[16:19], s15 offen offset:32")
    e(f"s_add_u32 s15, s13, {WS_QKB + 896}")
    e("buffer_load_dwordx4 v[104:107], v231, s[16:19], s15 offen")
    e("buffer_load_dwordx4 v[108:111], v231, s[16:19], s15 offen offset:32")
    e("s_mul_i32 s15, s10, 28"); e("v_add_u32 v232, s15, v3"); e("v_lshlrev_b32 v232, 12, v232")
    e("v_lshl_add_u32 v232, v4, 3, v232"); e("s_lshl_b32 s15, s12, 1"); e("v_add_u32 v232, s15, v232")
    e(f"s_mov_b32 s15, {WS_VBT - 64}")
    for kt in range(2):
        for st in range(2):
            r0 = 128 + 8*kt + 4*st
            e(f"buffer_load_dwordx2 v[{r0}:{r0+1}], v232, s[16:19], s15 offen offset:{kt*64+st*32}")
            e(f"buffer_load_dwordx2 v[{r0+2}:{r0+3}], v232, s[16:19], s15 offen offset:{kt*64+st*32+16}")
    e(f"v_lshlrev_b32 v233, 2, v230"); e(f"v_add_u32 v233, {WS_G}, v233")
    e("buffer_load_dword v234, v233, s[16:19], 0 offen")
    e("s_waitcnt vmcnt(0)")
    e("v_cndmask_b32 v14, v14, 0, s[30:31]"); e("v_cndmask_b32 v15, v15, 0, s[30:31]"); e("s_nop 1")
    for kt in range(2):
        S = f"v[{32+16*kt}:{47+16*kt}]"
        e(f"v_mfma_f32_32x32x16_bf16 {S}, v[{96+8*kt}:{99+8*kt}], v[8:11], 0")
        e(f"v_mfma_f32_32x32x16_bf16 {S}, v[{100+8*kt}:{103+8*kt}], v[12:15], {S}")
    e("v_lshlrev_b32 v235, 2, v4"); e("v_sub_u32 v235, v3, v235"); e("v_add_u32 v235, 32, v235")
    e("s_cmp_eq_u32 s11, 0"); e("s_cselect_b32 s15, 0x1000, 0"); e("v_add_u32 v236, s15, v235")
    e("s_nop 15")
    for kt in range(2):
        for r in range(16):
            kk = kt*32 + 8*(r//4) + r % 4
            e(f"v_subrev_u32 v237, {kk}, v{236 if kt == 0 else 235}"); e("v_and_b32 v237, 0xfffffff1, v237")
            e("v_cmp_eq_u32 vcc, 0, v237"); e("v_mov_b32 v238, 0xf149f2ca"); e("s_nop 0")
            e(f"v_cndmask_b32 v{32+16*kt+r}, v238, v{32+16*kt+r}, vcc")
    e("v_max3_f32 v209, v32, v33, v34")
    for r in range(35, 63, 2): e(f"v_max3_f32 v209, v209, v{r}, v{r+1}")
    e("v_max_f32 v209, v209, v63")
    halfmax(209, 210); e("v_max_f32 v209, v209, v210"); e("v_mul_f32 v209, s3, v209")
    for r in range(32, 64): e(f"v_fma_f32 v{r}, v{r}, s3, -v209")
    for r in range(32, 64): e(f"v_exp_f32 v{r}, v{r}")
    e("s_nop 0")
    e("v_add_f32 v209, v32, v33")
    for r in range(34, 64): e(f"v_add_f32 v209, v209, v{r}")
    halfmax(209, 210); e("v_add_f32 v209, v209, v210")
    for r in range(16): e(f"v_cvt_pk_bf16_f32 v{160+r}, v{32+2*r}, v{33+2*r}")
    e("s_nop 1")
    for kt in range(2):
        for st in range(2):
            c = "0" if kt+st == 0 else "v[192:207]"
            e(f"v_mfma_f32_32x32x16_bf16 v[192:207], v[{128+8*kt+4*st}:{131+8*kt+4*st}], v[{160+8*kt+4*st}:{163+8*kt+4*st}], {c}")
    e(f"v_mul_f32 v234, {fbits(math.log2(math.e))}, v234"); e("v_exp_f32 v234, v234"); e("s_nop 0")
    e("v_add_f32 v234, 1.0, v234"); e("v_mul_f32 v234, v234, v209"); e("v_rcp_f32 v234, v234")
    e("v_mul_lo_u32 v238, v230, s14"); e("v_lshl_add_u32 v238, v4, 3, v238")
    e(f"s_add_u32 s15, s13, {WS_OM + 896}")
    e("s_nop 15")
    for r in range(16): e(f"v_mul_f32 v{192+r}, v{192+r}, v234")
    for G in range(4):
        e(f"v_cvt_pk_bf16_f32 v{192+4*G}, v{192+4*G}, v{193+4*G}")
        e(f"v_cvt_pk_bf16_f32 v{193+4*G}, v{194+4*G}, v{195+4*G}")
        if G == 3: e("s_andn2_b64 exec, exec, s[30:31]")
        e(f"buffer_store_dwordx2 v[{192+4*G}:{193+4*G}], v238, s[16:19], s15 offen offset:{16*G}")
    lab("K2_end"); e("s_endpgm")

def gen_k3():
    kernel_head("k3_kernel")
    e("s_lshr_b32 s3, s2, 4"); e("s_and_b32 s33, s2, 15")
    e("s_cmp_ge_u32 s3, 14"); e("s_cbranch_scc1 K3_end")
    e("s_load_dwordx2 s[38:39], s[0:1], 32"); e("s_load_dwordx2 s[40:41], s[0:1], 56")
    e("s_load_dwordx2 s[42:43], s[0:1], 72"); e("s_load_dwordx2 s[46:47], s[0:1], 88")
    e("v_lshrrev_b32 v1, 6, v0"); e("v_and_b32 v2, 63, v0"); e("v_and_b32 v3, 31, v0"); e("v_bfe_u32 v4, v0, 5, 1")
    e("s_waitcnt lgkmcnt(0)")
    srd(16, 46, 47, WS_SIZE); srd(20, 42, 43, 2048*448*2)
    e("s_lshl_b32 s34, s33, 7"); e("v_lshl_add_u32 v5, v1, 5, v3"); e("v_add_u32 v5, s34, v5")
    e("s_movk_i32 s35, 1792"); e("v_mul_lo_u32 v6, v5, s35"); e("v_lshl_add_u32 v6, v4, 4, v6")
    e(f"s_mov_b32 s36, {WS_OM}")
    for ks in range(28):
        e(f"buffer_load_dwordx4 v[{16+4*ks}:{19+4*ks}], v6, s[16:19], s36 offen offset:{32*ks}")
    e("v_bfe_u32 v8, v2, 4, 1"); e("v_bfe_u32 v9, v2, 2, 2"); e("v_and_b32 v10, 3, v2")
    e("v_lshl_add_u32 v7, v4, 3, v9"); e("v_lshlrev_b32 v7, 6, v7")
    e("v_lshl_add_u32 v7, v8, 5, v7"); e("v_lshl_add_u32 v7, v10, 3, v7")
    e("v_lshlrev_b32 v11, 4, v0")
    e("s_movk_i32 s35, 896"); e("v_lshrrev_b32 v13, 2, v0"); e("v_mul_lo_u32 v13, v13, s35")
    e("v_and_b32 v14, 3, v0"); e("v_lshl_add_u32 v13, v14, 4, v13")
    e("s_lshl_b32 s37, s3, 6")
    for hf in range(2):
        srd(12, 38+2*hf, 39+2*hf, 448*448*2)
        for r in range(7):
            e(f"s_add_u32 s35, s37, {r*64*896}")
            e(f"buffer_load_dwordx4 v[{144+28*hf+4*r}:{147+28*hf+4*r}], v13, s[12:15], s35 offen")
    for hf in range(2):
        for r in range(7):
            e(f"s_waitcnt vmcnt({13-7*hf-r})")
            e(f"ds_write_b128 v11, v[{144+28*hf+4*r}:{147+28*hf+4*r}] offset:{hf*28672 + r*4096}")
    e("s_waitcnt lgkmcnt(0)"); e("s_barrier")
    def rd(ks, buf):
        r0 = 208 + buf*4
        e(f"ds_read_b64_tr_b16 v[{r0}:{r0+1}], v7 offset:{ks*1024}")
        e(f"ds_read_b64_tr_b16 v[{r0+2}:{r0+3}], v7 offset:{ks*1024 + 256}")
    rd(0, 0)
    for ks in range(56):
        if ks == 28: e("s_waitcnt vmcnt(0)")
        if ks < 55: rd(ks+1, (ks+1) & 1); e("s_waitcnt lgkmcnt(2)")
        else: e("s_waitcnt lgkmcnt(0)")
        k2 = ks % 28
        e(f"v_mfma_f32_32x32x16_bf16 v[128:143], v[{208+(ks&1)*4}:{211+(ks&1)*4}], v[{16+4*k2}:{19+4*k2}], {'v[128:143]' if ks else '0'}")
        if ks < 28:
            e(f"buffer_load_dwordx4 v[{16+4*ks}:{19+4*ks}], v6, s[16:19], s36 offen offset:{896+32*ks}")
    e("s_movk_i32 s35, 896"); e("v_mul_lo_u32 v13, v5, s35"); e("v_lshl_add_u32 v13, v4, 3, v13")
    e("s_nop 15"); e("s_nop 3")
    for G in range(4):
        e(f"v_cvt_pk_bf16_f32 v{128+4*G}, v{128+4*G}, v{129+4*G}")
        e(f"v_cvt_pk_bf16_f32 v{129+4*G}, v{130+4*G}, v{131+4*G}")
        e(f"buffer_store_dwordx2 v[{128+4*G}:{129+4*G}], v13, s[20:23], s37 offen offset:{16*G}")
    lab("K3_end"); e("s_endpgm")

def desc(name, vgpr=256):
    return f""".amdhsa_kernel {name}
  .amdhsa_next_free_vgpr {vgpr}
  .amdhsa_next_free_sgpr 102
  .amdhsa_accum_offset {vgpr}
  .amdhsa_group_segment_fixed_size 0
  .amdhsa_kernarg_size 96
  .amdhsa_user_sgpr_count 2
  .amdhsa_user_sgpr_kernarg_segment_ptr 1
  .amdhsa_system_sgpr_workgroup_id_x 1
.end_amdhsa_kernel
"""
def main():
    stages = sys.argv[2] if len(sys.argv) > 2 else "123"
    hdr = open(f"cdna_kernels/{NAME}.s.ref").read().split("; Override")[0]
    la = ""
    if "1" in stages: la += "; @launch kernel=k1_kernel grid=(240,1,1) block=(256,1,1) lds=114688\n"
    L.append('.amdgcn_target "amdgcn-amd-amdhsa--gfx950"'); L.append(".text")
    if "2" in stages: la += "; @launch kernel=k2_kernel grid=(256,1,1) block=(512,1,1) lds=65536\n"
    if "3" in stages: la += "; @launch kernel=k3_kernel grid=(224,1,1) block=(256,1,1) lds=57344\n"
    gen_k1(); gen_k2(); gen_k3()
    ds = '.section .rodata,"a"\n.p2align 6\n' + desc("k1_kernel") + ".p2align 6\n" + desc("k2_kernel") + ".p2align 6\n" + desc("k3_kernel")
    open(sys.argv[1], "w").write(hdr + la + "\n".join(L) + "\n" + ds)
main()
```

```python
import sys
NAME = "gated_mix__grouped_kv_mqa__sliding_local_dilated__prompt"
WS_QA, WS_KA, WS_VA, WS_QKB, WS_VBT, WS_OM = 0x0, 0x200000, 0x220000, 0x240000, 0x5C0000, 0x780000
WS_G = 0xB00000
WS_SIZE = 0xB20000
L = []
def e(s): L.append("    " + s)
def lab(s): L.append(s + ":")

def srd(d, lo, hi, size):
    e(f"s_mov_b32 s{d}, s{lo}"); e(f"s_and_b32 s{d+1}, s{hi}, 0xffff")
    e(f"s_mov_b32 s{d+2}, {size}"); e(f"s_mov_b32 s{d+3}, 0x00020000")

STAMP = False
def stamp(i):
    if STAMP: e(f"s_memtime s[{60+2*i}:{61+2*i}]")
def dump(n, kid):
    if not STAMP: return
    e("s_waitcnt lgkmcnt(0) vmcnt(0)"); stamp(n); e("s_waitcnt lgkmcnt(0)")
    e("s_mov_b64 exec, 1")
    e(f"s_lshl_b32 s59, s2, 6"); e(f"s_add_u32 s59, s59, {0xB02000 + kid*0x8000}")
    e("v_lshrrev_b32 v250, 6, v0"); e("s_nop 0"); e("v_readfirstlane_b32 s58, v250")
    e("s_lshl_b32 s58, s58, 15"); e("s_cmp_eq_u32 s58, 0"); e("s_cbranch_scc0 Lskip%d_%d" % (kid, len(L)))
    k = len(L) - 1
    for i in range(n+1):
        e(f"s_sub_u32 s57, s{60+2*i}, s60"); e("v_mov_b32 v251, s57"); e("v_mov_b32 v252, s59")
        e(f"buffer_store_dword v251, v252, s[16:19], 0 offen offset:{4*i}")
    lab("Lskip%d_%d" % (kid, k))
def kernel_head(name):
    L.append(f".globl {name}"); L.append(".p2align 8"); L.append(f".type {name},@function"); lab(name)

def gen_k1():
    kernel_head("k1_kernel")
    e("s_lshr_b32 s3, s2, 4"); e("s_and_b32 s33, s2, 7"); e("s_lshl_b32 s33, s33, 1"); e("s_bfe_u32 s34, s2, 0x10003"); e("s_or_b32 s33, s33, s34")
    e("s_cmp_ge_u32 s3, 15"); e("s_cbranch_scc1 K1_end"); stamp(0)
    e("s_load_dwordx8 s[36:43], s[0:1], 0")
    e("s_load_dwordx2 s[44:45], s[0:1], 48")
    e("s_load_dwordx2 s[46:47], s[0:1], 88")
    e("v_lshrrev_b32 v1, 6, v0")
    e("v_and_b32 v2, 63, v0")
    e("v_and_b32 v3, 31, v0")
    e("v_bfe_u32 v4, v0, 5, 1")
    e("s_waitcnt lgkmcnt(0)")
    srd(8, 36, 37, 2048*448*2)
    srd(16, 46, 47, WS_SIZE)
    e("s_lshl_b32 s34, s33, 7")
    e("v_lshl_add_u32 v5, v1, 5, v3"); e("v_add_u32 v5, s34, v5")
    e("s_nop 0"); e("v_readfirstlane_b32 s35, v1")
    e("s_lshl_b32 s52, s35, 5"); e("s_add_u32 s52, s52, s34"); e("s_mul_i32 s52, s52, 896")
    e("s_mul_i32 s53, s35, 29184")
    e("v_lshlrev_b32 v6, 4, v2")
    for i in range(28):
        e(f"s_add_u32 s54, s52, {i*1024}")
        e(f"buffer_load_dwordx4 v[{16+4*i}:{19+4*i}], v6, s[8:11], s54 offen")
    e("v_bfe_u32 v8, v2, 4, 1")
    e("v_bfe_u32 v9, v2, 2, 2")
    e("v_and_b32 v10, 3, v2")
    e("v_lshl_add_u32 v7, v4, 3, v9"); e("v_lshlrev_b32 v7, 6, v7")
    e("v_lshl_add_u32 v7, v8, 5, v7"); e("v_lshl_add_u32 v7, v10, 3, v7")
    e("v_lshlrev_b32 v11, 4, v0")
    e("v_lshlrev_b32 v12, 3, v0")
    e("v_add_u32 v224, 57344, v7"); e("v_add_u32 v225, 57344, v11"); e("v_add_u32 v226, 57344, v12")
    e("v_cmp_le_u32 s[30:31], 32, v2")
    for nc in range(15):
        e(f"s_cmp_eq_u32 s3, {nc}"); e(f"s_cbranch_scc1 K1_v{nc}")
    e("s_branch K1_end")
    for nc in range(15):
        lab(f"K1_v{nc}")
        if nc < 3: blocks = [("QA", 4*nc+b) for b in range(4)]
        elif nc == 3: blocks = [("QA", 12), ("QA", 13), ("KA", 0), ("VA", 0)]
        elif nc < 11: blocks = [("QKB", 4*(nc-4)+b) for b in range(4)]
        elif nc < 14: blocks = [("VB", 4*(nc-11)+b) for b in range(4)]
        else: blocks = [("VB", 12), ("VB", 13)]
        def wsetup(ty, idx):
            if ty == "QA": srd(12, 38, 39, 448*448*2); stride, col = 896, idx*32
            elif ty == "QKB": srd(12, 44, 45, 448*1344*2); stride, col = 2688, idx*32
            else: srd(12, 44, 45, 448*1344*2); stride, col = 2688, 896+idx*32
            e(f"s_movk_i32 s35, {stride}")
            e("v_lshrrev_b32 v227, 2, v0"); e("v_mul_lo_u32 v227, v227, s35")
            e("v_and_b32 v14, 3, v0"); e("v_lshl_add_u32 v227, v14, 4, v227")
            return stride, col
        for bi in range(2):
            stride, col = wsetup(*blocks[bi])
            for r in range(7):
                e(f"s_mov_b32 s35, {col*2 + r*64*stride}")
                e(f"buffer_load_dwordx4 v[{128+28*bi+4*r}:{131+28*bi+4*r}], v227, s[12:15], s35 offen")
        e("s_mov_b32 s54, 0x4924925")
        for i in range(28):
            e(f"v_add_u32 v13, {i*64}, v2"); e("v_mul_hi_u32 v14, v13, s54")
            e("v_lshlrev_b32 v13, 4, v13"); e("v_lshl_add_u32 v13, v14, 4, v13"); e("v_add_u32 v13, s53, v13")
            e(f"s_waitcnt vmcnt({41-i})")
            e(f"ds_write_b128 v13, v[{16+4*i}:{19+4*i}]")
        e("v_mul_u32_u24 v13, 912, v3"); e("v_lshl_add_u32 v13, v4, 4, v13"); e("v_add_u32 v13, s53, v13")
        e("s_waitcnt lgkmcnt(0)")
        for ks in range(28):
            e(f"ds_read_b128 v[{16+4*ks}:{19+4*ks}], v13 offset:{32*ks}")
        e("s_waitcnt lgkmcnt(0)"); e("s_barrier"); stamp(1)
        for bi in range(2):
            for r in range(7):
                e(f"s_waitcnt vmcnt({13-7*bi-r})")
                e(f"ds_write_b128 v11, v[{128+28*bi+4*r}:{131+28*bi+4*r}] offset:{bi*28672 + r*4096}")
        for bi, (ty, idx) in list(enumerate(blocks))[2:]:
            base = bi*28672
            if ty in ("QA", "QKB", "VB"):
                if ty == "QA": srd(12, 38, 39, 448*448*2); stride, col = 896, idx*32
                elif ty == "QKB": srd(12, 44, 45, 448*1344*2); stride, col = 2688, idx*32
                else: srd(12, 44, 45, 448*1344*2); stride, col = 2688, 896+idx*32
                e(f"s_movk_i32 s35, {stride}")
                e("v_lshrrev_b32 v13, 2, v0"); e("v_mul_lo_u32 v13, v13, s35")
                e("v_and_b32 v14, 3, v0"); e("v_lshl_add_u32 v13, v14, 4, v13")
                for r in range(7):
                    e(f"s_mov_b32 s35, {col*2 + r*64*stride}")
                    e(f"buffer_load_dwordx4 v[{128+4*r}:{131+4*r}], v13, s[12:15], s35 offen")
                for r in range(7):
                    e(f"s_waitcnt vmcnt({6-r})")
                    e(f"ds_write_b128 {'v11' if bi<2 else 'v225'}, v[{128+4*r}:{131+4*r}] offset:{(base%57344) + r*4096}")
            else:
                if ty == "KA": srd(12, 40, 41, 448*28*2)
                else: srd(12, 42, 43, 448*28*2)
                e("v_lshrrev_b32 v13, 3, v0"); e("v_mul_u32_u24 v13, 56, v13")
                e("v_and_b32 v14, 7, v0"); e("v_lshl_add_u32 v13, v14, 3, v13")
                e("v_mov_b32 v15, 0x7fffff00")
                e("v_cmp_eq_u32 vcc, 7, v14"); e("s_nop 1"); e("v_cndmask_b32 v13, v13, v15, vcc")
                for r in range(14):
                    e(f"s_movk_i32 s35, {r*32*56}")
                    e(f"buffer_load_dwordx2 v[{128+2*r}:{129+2*r}], v13, s[12:15], s35 offen")
                if ty == "KA":
                    e("s_load_dwordx2 s[48:49], s[0:1], 64"); e("s_waitcnt lgkmcnt(0)")
                    srd(20, 48, 49, 896)
                    e("v_lshrrev_b32 v15, 3, v0"); e("v_lshlrev_b32 v15, 1, v15")
                    e("s_and_saveexec_b64 s[50:51], vcc")
                    for r in range(14):
                        e(f"buffer_load_ushort v{128+2*r}, v15, s[20:23], 0 offen offset:{r*64}")
                    e("s_mov_b64 exec, s[50:51]")
                    e("s_waitcnt vmcnt(0)")
                for r in range(14):
                    e(f"s_waitcnt vmcnt({13-r})")
                    e(f"ds_write_b64 {'v12' if bi<2 else 'v226'}, v[{128+2*r}:{129+2*r}] offset:{(base%57344) + r*2048}")
        e("s_waitcnt lgkmcnt(0)"); e("s_barrier"); stamp(2)
        nb = len(blocks)
        def rd(ks, buf):
            for bi in range(nb):
                r0 = 192 + buf*16 + bi*4
                ar = 'v7' if bi<2 else 'v224'
                e(f"ds_read_b64_tr_b16 v[{r0}:{r0+1}], {ar} offset:{(bi%2)*28672 + ks*1024}")
                e(f"ds_read_b64_tr_b16 v[{r0+2}:{r0+3}], {ar} offset:{(bi%2)*28672 + ks*1024 + 256}")
        rd(0, 0)
        for ks in range(28):
            if ks < 27:
                rd(ks+1, (ks+1) & 1); e(f"s_waitcnt lgkmcnt({2*nb})")
            else: e("s_waitcnt lgkmcnt(0)")
            for bi, (ty, idx) in enumerate(blocks):
                w = f"v[{192+(ks&1)*16+bi*4}:{195+(ks&1)*16+bi*4}]"; x = f"v[{16+4*ks}:{19+4*ks}]"
                acc = f"v[{128+16*bi}:{143+16*bi}]"
                c = acc if ks else "0"
                if ty in ("VA", "VB"): e(f"v_mfma_f32_32x32x16_bf16 {acc}, {x}, {w}, {c}")
                else: e(f"v_mfma_f32_32x32x16_bf16 {acc}, {w}, {x}, {c}")
        e("s_nop 15"); e("s_nop 3"); stamp(3)
        for bi, (ty, idx) in enumerate(blocks):
            a = 128+16*bi
            if ty == "QA":
                e("v_lshrrev_b32 v13, 1, v5"); e("v_lshlrev_b32 v13, 11, v13")
                e("v_and_b32 v14, 1, v5"); e("v_lshl_add_u32 v13, v14, 8, v13")
            elif ty == "KA":
                e("v_lshrrev_b32 v13, 5, v5"); e("v_lshlrev_b32 v13, 11, v13")
                e("v_lshl_add_u32 v13, v3, 4, v13"); e("v_lshl_add_u32 v13, v4, 3, v13")
                e(f"v_add_u32 v13, {WS_KA}, v13")
                e(f"v_lshlrev_b32 v14, 2, v5"); e(f"v_add_u32 v14, {WS_G}, v14")
                e("s_mov_b64 s[50:51], exec"); e("s_mov_b64 exec, s[30:31]")
                e(f"buffer_store_dword v{a+12}, v14, s[16:19], 0 offen")
                e(f"v_mov_b32 v{a+12}, 0")
                e("s_mov_b64 exec, s[50:51]")
            elif ty == "VA":
                e("v_lshrrev_b32 v13, 5, v5"); e("v_lshlrev_b32 v13, 11, v13")
                e("v_lshl_add_u32 v13, v2, 4, v13")
                e(f"v_add_u32 v13, {WS_VA}, v13")
                e("v_cmp_eq_u32 vcc, 28, v3"); e("s_nop 1")
                for r in range(16): e(f"v_cndmask_b32 v{a+r}, v{a+r}, 1.0, vcc")
            elif ty == "QKB":
                e("s_movk_i32 s35, 1792"); e("v_mul_lo_u32 v13, v5, s35"); e("v_lshl_add_u32 v13, v4, 3, v13")
                e(f"v_add_u32 v13, {WS_QKB + idx*64}, v13")
            else:
                e(f"v_add_u32 v13, {idx*32}, v3"); e("v_lshlrev_b32 v13, 12, v13")
                e("v_sub_u32 v14, v5, v3"); e("v_lshl_add_u32 v13, v14, 1, v13"); e("v_lshl_add_u32 v13, v4, 3, v13")
                e(f"v_add_u32 v13, {WS_VBT}, v13")
            if ty == "QA":
                e(f"s_mov_b32 s35, {fbits(CSC)}")
                for r in range(16): e(f"v_mul_f32 v{a+r}, s35, v{a+r}")
            for G in range(4):
                e(f"v_cvt_pk_bf16_f32 v{a+4*G}, v{a+4*G}, v{a+4*G+1}")
                e(f"v_cvt_pk_bf16_f32 v{a+4*G+1}, v{a+4*G+2}, v{a+4*G+3}")
                if ty == "QA":
                    def cst(n):
                        h, d = n//28, n % 28
                        return (d//16)*1024 + ((d//8) % 2)*512 + h*16 + (d % 8)*2
                    n = idx*32 + 8*G
                    e(f"v_mov_b32 v14, {cst(n)}"); e(f"v_mov_b32 v15, {cst(n+4)}")
                    e("v_cndmask_b32 v14, v14, v15, s[30:31]"); e("v_add_u32 v14, v14, v13")
                    e(f"buffer_store_dwordx2 v[{a+4*G}:{a+4*G+1}], v14, s[16:19], 0 offen")
                else:
                    off = {"KA": (G//2)*1024 + (G % 2)*512, "VA": (G//2)*1024 + (G % 2)*8, "QKB": 16*G, "VB": 16*G}[ty]
                    e(f"buffer_store_dwordx2 v[{a+4*G}:{a+4*G+1}], v13, s[16:19], 0 offen offset:{off}")
        dump(4, 0)
        e("s_endpgm")
    lab("K1_end"); e("s_endpgm")

import math
CSC = 28 ** -0.5 * math.log2(math.e)
import struct
def fbits(f): return "0x%08x" % struct.unpack("<I", struct.pack("<f", f))[0]
def halfmax(v, t):
    e(f"v_mov_b32 v{t}, v{v}"); e("s_nop 1"); e(f"v_permlane32_swap_b32 v{v}, v{t}"); e("s_nop 1")
def gen_k2():
    kernel_head("k2_kernel")
    e("s_cmp_ge_u32 s2, 256"); e("s_cbranch_scc1 K2_end"); stamp(0)
    e("s_load_dwordx2 s[46:47], s[0:1], 88")
    e("v_lshrrev_b32 v1, 6, v0"); e("v_and_b32 v2, 63, v0"); e("v_and_b32 v3, 31, v0"); e("v_bfe_u32 v4, v0, 5, 1")
    e("s_nop 0"); e("v_readfirstlane_b32 s4, v1")
    e("s_waitcnt lgkmcnt(0)")
    srd(16, 46, 47, WS_SIZE)
    e("s_and_b32 s5, s4, 3"); e("s_lshr_b32 s6, s4, 2")
    e("s_lshl_b32 s7, s2, 2"); e("s_add_u32 s7, s7, s5")
    e(f"s_mov_b32 s3, {fbits(CSC)}")
    e("v_cmp_le_u32 s[30:31], 32, v2")
    e("v_lshlrev_b32 v5, 4, v2")
    e("v_lshlrev_b32 v6, 4, v0")
    e("s_lshl_b32 s8, s7, 11")
    e("buffer_load_dwordx4 v[8:11], v5, s[16:19], s8 offen")
    e("buffer_load_dwordx4 v[12:15], v5, s[16:19], s8 offen offset:1024")
    def stage_load(c):
        for p in range(4):
            off = (WS_KA if p % 2 == 0 else WS_VA) + (p//2)*65536 + c*8192
            e(f"s_mov_b32 s9, {off}")
            e(f"buffer_load_dwordx4 v[{212+4*p}:{215+4*p}], v6, s[16:19], s9 offen")
    def stage_write(buf):
        for p in range(4):
            e(f"ds_write_b128 {'v17' if buf == 2 else 'v6'}, v[{212+4*p}:{215+4*p}] offset:{(buf%2)*32768 + p*8192}")
    stage_load(0)
    e("s_waitcnt vmcnt(0)")
    e("v_cndmask_b32 v14, v14, 0, s[30:31]"); e("v_cndmask_b32 v15, v15, 0, s[30:31]")
    stage_write(0)
    stage_load(1)
    for r in range(16): e(f"v_mov_b32 v{192+r}, 0")
    for r in range(16): e(f"v_mov_b32 v{236+r}, 0")
    e("s_lshl_b32 s10, s6, 14"); e("v_add_u32 v7, s10, v5")
    e("v_add_u32 v16, 0x10000, v7"); e("v_add_u32 v17, 0x10000, v6")
    e("s_waitcnt vmcnt(0)"); stage_write(1)
    e("s_waitcnt lgkmcnt(0)"); e("s_barrier"); stamp(1)
    SB = [32, 96]
    def rdK(c):
        b = c % 3; ar = "v16" if b == 2 else "v7"
        for t in range(4):
            for st in range(2):
                e(f"ds_read_b128 v[{160+8*t+4*st}:{163+8*t+4*st}], {ar} offset:{(b%2)*32768 + t*2048 + st*1024}")
    def qk(c, t, st):
        S = f"v[{SB[c&1]+16*t}:{SB[c&1]+15+16*t}]"
        e(f"v_mfma_f32_32x32x16_bf16 {S}, v[{160+8*t+4*st}:{163+8*t+4*st}], v[{8+4*st}:{11+4*st}], {S if st else 'v[236:251]'}")
    rdK(0); e("s_waitcnt lgkmcnt(0)")
    for t in range(4): qk(0, t, 0); qk(0, t, 1)
    for c in range(8):
        b = c % 3; ar = "v16" if b == 2 else "v7"; S0 = SB[c & 1]
        if c == 1: stamp(2)
        if c == 2: stamp(3)
        if c < 6: stage_load(c+2)
        if c < 7: rdK(c+1)
        mf = [(t, st) for t in range(4) for st in range(2)] if c < 7 else []
        e("s_nop 7")
        e(f"v_max3_f32 v209, v{S0}, v{S0+1}, v{S0+2}")
        for r in range(3, 63, 2): e(f"v_max3_f32 v209, v209, v{S0+r}, v{S0+r+1}")
        e(f"v_max_f32 v209, v209, v{S0+63}")
        halfmax(209, 210)
        e("v_max_f32 v209, v209, v210")
        if c > 0:
            e("v_cmp_lt_f32 vcc, 8.0, v209"); e(f"s_cbranch_vccz K2_back{c}")
            e("v_max_f32 v209, 0, v209")
        e("v_sub_f32 v210, 0, v209"); e("v_exp_f32 v210, v210")
        for r in range(64): e(f"v_sub_f32 v{S0+r}, v{S0+r}, v209")
        for r in range(16): e(f"v_mul_f32 v{192+r}, v{192+r}, v210")
        for r in range(16): e(f"v_sub_f32 v{236+r}, v{236+r}, v209")
        lab(f"K2_back{c}")
        if mf: e("s_waitcnt lgkmcnt(0)")
        for t in range(4):
            for r in range(16):
                e(f"v_exp_f32 v{S0+16*t+r}, v{S0+16*t+r}")
                if r in (0, 8) and mf: qk(c+1, *mf.pop(0))
            e(f"ds_read_b128 v[228:231], {ar} offset:{(b%2)*32768 + 8192 + t*2048}")
            e(f"ds_read_b128 v[232:235], {ar} offset:{(b%2)*32768 + 8192 + t*2048 + 1024}")
            for r in range(8): e(f"v_cvt_pk_bf16_f32 v{S0+16*t+r}, v{S0+16*t+2*r}, v{S0+16*t+2*r+1}")
            e("s_waitcnt lgkmcnt(0)")
            e(f"v_mfma_f32_32x32x16_bf16 v[192:207], v[228:231], v[{S0+16*t}:{S0+16*t+3}], v[192:207]")
            e(f"v_mfma_f32_32x32x16_bf16 v[192:207], v[232:235], v[{S0+16*t+4}:{S0+16*t+7}], v[192:207]")
        if c < 6:
            e("s_waitcnt vmcnt(0)"); stage_write((c+2) % 3)
        e("s_waitcnt lgkmcnt(0)"); e("s_barrier")
    e("s_nop 15"); stamp(4); e("v_sub_f32 v208, 0, v236")
    e("s_cmp_ge_u32 s4, 4"); e("s_cbranch_scc1 K2_hi")
    e("s_barrier")
    e("s_mul_i32 s10, s5, 4352"); e("v_lshlrev_b32 v7, 2, v2"); e("v_add_u32 v7, s10, v7")
    e("ds_read_b32 v32, v7 offset:0")
    for r in range(16): e(f"ds_read_b32 v{33+r}, v7 offset:{256*(r+1)}")
    e("s_lshl_b32 s10, s7, 1"); e("v_lshrrev_b32 v50, 4, v3"); e("v_add_u32 v50, s10, v50")
    e(f"v_lshlrev_b32 v51, 2, v50"); e(f"v_add_u32 v51, {WS_G}, v51")
    e("buffer_load_dword v52, v51, s[16:19], 0 offen")
    e("s_waitcnt lgkmcnt(0) vmcnt(0)")
    e("v_max_f32 v53, v208, v32")
    e("v_sub_f32 v54, v208, v53"); e("v_sub_f32 v55, v32, v53")
    e("v_exp_f32 v54, v54"); e("v_exp_f32 v55, v55"); e("s_nop 0")
    for r in range(16):
        e(f"v_mul_f32 v{192+r}, v{192+r}, v54"); e(f"v_fmac_f32 v{192+r}, v{33+r}, v55")
    e("v_mov_b32 v56, v204"); halfmax(56, 57)
    e(f"v_mul_f32 v52, {fbits(-math.log2(math.e))}, v52"); e("v_exp_f32 v52, v52"); e("s_nop 0")
    e("v_add_f32 v52, 1.0, v52"); e("v_mul_f32 v52, v52, v57"); e("v_rcp_f32 v52, v52"); e("s_nop 0")
    for r in range(16): e(f"v_mul_f32 v{192+r}, v{192+r}, v52")
    e("v_lshrrev_b32 v58, 5, v50"); e("s_mov_b32 s10, 57344"); e("v_mul_lo_u32 v58, v58, s10")
    e("v_and_b32 v59, 31, v50"); e("v_lshl_add_u32 v58, v59, 4, v58"); e(f"v_add_u32 v58, {WS_OM}, v58")
    e("v_and_b32 v59, 15, v3"); e("v_mul_u32_u24 v59, 28, v59"); e("v_lshl_add_u32 v59, v4, 2, v59")
    for G in range(4):
        e(f"v_cvt_pk_bf16_f32 v{192+4*G}, v{192+4*G}, v{193+4*G}")
        e(f"v_cvt_pk_bf16_f32 v{193+4*G}, v{194+4*G}, v{195+4*G}")
        e(f"v_add_u32 v60, {8*G}, v59")
        e("v_lshrrev_b32 v61, 3, v60"); e("v_lshlrev_b32 v61, 9, v61"); e("v_and_b32 v60, 7, v60")
        e("v_lshl_add_u32 v61, v60, 1, v61"); e("v_add_u32 v61, v61, v58")
        if G == 3: e("s_andn2_b64 exec, exec, s[30:31]")
        e(f"buffer_store_dwordx2 v[{192+4*G}:{193+4*G}], v61, s[16:19], 0 offen")
    dump(5, 1)
    e("s_endpgm")
    lab("K2_hi")
    e("s_mul_i32 s10, s5, 4352"); e("v_lshlrev_b32 v7, 2, v2"); e("v_add_u32 v7, s10, v7")
    e("ds_write_b32 v7, v208 offset:0")
    for r in range(16): e(f"ds_write_b32 v7, v{192+r} offset:{256*(r+1)}")
    e("s_waitcnt lgkmcnt(0)"); e("s_barrier")
    e("s_and_b32 s10, s2, 3"); e("s_lshl_b32 s10, s10, 2"); e("s_add_u32 s10, s10, s5")
    e("s_lshr_b32 s11, s2, 2"); e("s_lshl_b32 s12, s11, 5")
    e("s_mul_i32 s13, s10, 56")
    e("v_add_u32 v230, s12, v3")
    e("s_movk_i32 s14, 1792"); e("v_mul_lo_u32 v231, v230, s14"); e("v_lshl_add_u32 v231, v4, 4, v231")
    e(f"s_add_u32 s15, s13, {WS_QKB}")
    e("buffer_load_dwordx4 v[8:11], v231, s[16:19], s15 offen")
    e("buffer_load_dwordx4 v[12:15], v231, s[16:19], s15 offen offset:32")
    e(f"s_add_u32 s15, s13, {WS_QKB + 896 - 32*1792}")
    e("buffer_load_dwordx4 v[96:99], v231, s[16:19], s15 offen")
    e("buffer_load_dwordx4 v[100:103], v231, s[16:19], s15 offen offset:32")
    e(f"s_add_u32 s15, s13, {WS_QKB + 896}")
    e("buffer_load_dwordx4 v[104:107], v231, s[16:19], s15 offen")
    e("buffer_load_dwordx4 v[108:111], v231, s[16:19], s15 offen offset:32")
    e("s_mul_i32 s15, s10, 28"); e("v_add_u32 v232, s15, v3"); e("v_lshlrev_b32 v232, 12, v232")
    e("v_lshl_add_u32 v232, v4, 3, v232"); e("s_lshl_b32 s15, s12, 1"); e("v_add_u32 v232, s15, v232")
    e(f"s_mov_b32 s15, {WS_VBT - 64}")
    for kt in range(2):
        for st in range(2):
            r0 = 128 + 8*kt + 4*st
            e(f"buffer_load_dwordx2 v[{r0}:{r0+1}], v232, s[16:19], s15 offen offset:{kt*64+st*32}")
            e(f"buffer_load_dwordx2 v[{r0+2}:{r0+3}], v232, s[16:19], s15 offen offset:{kt*64+st*32+16}")
    e(f"v_lshlrev_b32 v233, 2, v230"); e(f"v_add_u32 v233, {WS_G}, v233")
    e("buffer_load_dword v234, v233, s[16:19], 0 offen")
    e("s_waitcnt vmcnt(0)")
    e("v_cndmask_b32 v14, v14, 0, s[30:31]"); e("v_cndmask_b32 v15, v15, 0, s[30:31]"); e("s_nop 1")
    for kt in range(2):
        S = f"v[{32+16*kt}:{47+16*kt}]"
        e(f"v_mfma_f32_32x32x16_bf16 {S}, v[{96+8*kt}:{99+8*kt}], v[8:11], 0")
        e(f"v_mfma_f32_32x32x16_bf16 {S}, v[{100+8*kt}:{103+8*kt}], v[12:15], {S}")
    e("v_lshlrev_b32 v235, 2, v4"); e("v_sub_u32 v235, v3, v235"); e("v_add_u32 v235, 32, v235")
    e("s_cmp_eq_u32 s11, 0"); e("s_cselect_b32 s15, 0x1000, 0"); e("v_add_u32 v236, s15, v235")
    e("s_nop 15")
    for kt in range(2):
        for r in range(16):
            kk = kt*32 + 8*(r//4) + r % 4
            e(f"v_subrev_u32 v237, {kk}, v{236 if kt == 0 else 235}"); e("v_and_b32 v237, 0xfffffff1, v237")
            e("v_cmp_eq_u32 vcc, 0, v237"); e("v_mov_b32 v238, 0xf149f2ca"); e("s_nop 0")
            e(f"v_cndmask_b32 v{32+16*kt+r}, v238, v{32+16*kt+r}, vcc")
    e("v_max3_f32 v209, v32, v33, v34")
    for r in range(35, 63, 2): e(f"v_max3_f32 v209, v209, v{r}, v{r+1}")
    e("v_max_f32 v209, v209, v63")
    halfmax(209, 210); e("v_max_f32 v209, v209, v210"); e("v_mul_f32 v209, s3, v209")
    for r in range(32, 64): e(f"v_fma_f32 v{r}, v{r}, s3, -v209")
    for r in range(32, 64): e(f"v_exp_f32 v{r}, v{r}")
    e("s_nop 0")
    e("v_add_f32 v209, v32, v33")
    for r in range(34, 64): e(f"v_add_f32 v209, v209, v{r}")
    halfmax(209, 210); e("v_add_f32 v209, v209, v210")
    for r in range(16): e(f"v_cvt_pk_bf16_f32 v{160+r}, v{32+2*r}, v{33+2*r}")
    e("s_nop 1")
    for kt in range(2):
        for st in range(2):
            c = "0" if kt+st == 0 else "v[192:207]"
            e(f"v_mfma_f32_32x32x16_bf16 v[192:207], v[{128+8*kt+4*st}:{131+8*kt+4*st}], v[{160+8*kt+4*st}:{163+8*kt+4*st}], {c}")
    e(f"v_mul_f32 v234, {fbits(math.log2(math.e))}, v234"); e("v_exp_f32 v234, v234"); e("s_nop 0")
    e("v_add_f32 v234, 1.0, v234"); e("v_mul_f32 v234, v234, v209"); e("v_rcp_f32 v234, v234")
    e("s_mul_i32 s15, s11, 57344"); e(f"s_add_u32 s15, s15, {WS_OM}")
    e("v_lshlrev_b32 v238, 4, v3")
    e("s_mul_i32 s13, s10, 28"); e("s_add_u32 s13, s13, 448"); e("v_lshl_add_u32 v237, v4, 2, s13")
    e("s_nop 15")
    for r in range(16): e(f"v_mul_f32 v{192+r}, v{192+r}, v234")
    for G in range(4):
        e(f"v_cvt_pk_bf16_f32 v{192+4*G}, v{192+4*G}, v{193+4*G}")
        e(f"v_cvt_pk_bf16_f32 v{193+4*G}, v{194+4*G}, v{195+4*G}")
        e(f"v_add_u32 v236, {8*G}, v237")
        e("v_lshrrev_b32 v235, 3, v236"); e("v_lshlrev_b32 v235, 9, v235"); e("v_and_b32 v236, 7, v236")
        e("v_lshl_add_u32 v235, v236, 1, v235"); e("v_add_u32 v235, v235, v238")
        if G == 3: e("s_andn2_b64 exec, exec, s[30:31]")
        e(f"buffer_store_dwordx2 v[{192+4*G}:{193+4*G}], v235, s[16:19], s15 offen")
    lab("K2_end"); e("s_endpgm")

def gen_k3():
    kernel_head("k3_kernel")
    e("s_lshr_b32 s3, s2, 4"); e("s_and_b32 s33, s2, 7"); e("s_lshl_b32 s33, s33, 1"); e("s_bfe_u32 s34, s2, 0x10003"); e("s_or_b32 s33, s33, s34")
    e("s_cmp_ge_u32 s3, 14"); e("s_cbranch_scc1 K3_end"); stamp(0)
    e("s_load_dwordx2 s[38:39], s[0:1], 32"); e("s_load_dwordx2 s[40:41], s[0:1], 56")
    e("s_load_dwordx2 s[42:43], s[0:1], 72"); e("s_load_dwordx2 s[46:47], s[0:1], 88")
    e("v_lshrrev_b32 v1, 6, v0"); e("v_and_b32 v2, 63, v0"); e("v_and_b32 v3, 31, v0"); e("v_bfe_u32 v4, v0, 5, 1")
    e("s_waitcnt lgkmcnt(0)")
    srd(16, 46, 47, WS_SIZE); srd(20, 42, 43, 2048*448*2)
    e("s_lshl_b32 s34, s33, 7"); e("v_lshl_add_u32 v5, v1, 5, v3"); e("v_add_u32 v5, s34, v5")
    e("s_mov_b32 s35, 57344"); e("v_lshrrev_b32 v6, 5, v5"); e("v_mul_lo_u32 v6, v6, s35"); e("v_lshl_add_u32 v6, v2, 4, v6")
    for ks in range(28):
        e(f"s_mov_b32 s36, {WS_OM + 1024*ks}")
        e(f"buffer_load_dwordx4 v[{16+4*ks}:{19+4*ks}], v6, s[16:19], s36 offen")
    e("v_bfe_u32 v8, v2, 4, 1"); e("v_bfe_u32 v9, v2, 2, 2"); e("v_and_b32 v10, 3, v2")
    e("v_lshl_add_u32 v7, v4, 3, v9"); e("v_lshlrev_b32 v7, 6, v7")
    e("v_lshl_add_u32 v7, v8, 5, v7"); e("v_lshl_add_u32 v7, v10, 3, v7")
    e("v_lshlrev_b32 v11, 4, v0")
    e("s_movk_i32 s35, 896"); e("v_lshrrev_b32 v13, 2, v0"); e("v_mul_lo_u32 v13, v13, s35")
    e("v_and_b32 v14, 3, v0"); e("v_lshl_add_u32 v13, v14, 4, v13")
    e("s_lshl_b32 s37, s3, 6")
    for hf in range(2):
        srd(12, 38+2*hf, 39+2*hf, 448*448*2)
        for r in range(7):
            e(f"s_add_u32 s35, s37, {r*64*896}")
            e(f"buffer_load_dwordx4 v[{144+28*hf+4*r}:{147+28*hf+4*r}], v13, s[12:15], s35 offen")
    for hf in range(2):
        for r in range(7):
            e(f"s_waitcnt vmcnt({13-7*hf-r})")
            e(f"ds_write_b128 v11, v[{144+28*hf+4*r}:{147+28*hf+4*r}] offset:{hf*28672 + r*4096}")
    e("s_waitcnt lgkmcnt(0)"); stamp(1); e("s_barrier"); stamp(2)
    def rd(ks, buf):
        r0 = 208 + buf*4
        e(f"ds_read_b64_tr_b16 v[{r0}:{r0+1}], v7 offset:{ks*1024}")
        e(f"ds_read_b64_tr_b16 v[{r0+2}:{r0+3}], v7 offset:{ks*1024 + 256}")
    rd(0, 0)
    for ks in range(56):
        if ks == 28: stamp(3); e("s_waitcnt vmcnt(0)"); stamp(4)
        if ks < 55: rd(ks+1, (ks+1) & 1); e("s_waitcnt lgkmcnt(2)")
        else: e("s_waitcnt lgkmcnt(0)")
        k2 = ks % 28
        e(f"v_mfma_f32_32x32x16_bf16 v[128:143], v[{208+(ks&1)*4}:{211+(ks&1)*4}], v[{16+4*k2}:{19+4*k2}], {'v[128:143]' if ks else '0'}")
        if ks < 28:
            e(f"s_mov_b32 s36, {WS_OM + 1024*(28+ks)}")
            e(f"buffer_load_dwordx4 v[{16+4*ks}:{19+4*ks}], v6, s[16:19], s36 offen")
    e("s_movk_i32 s35, 896"); e("v_mul_lo_u32 v13, v5, s35"); e("v_lshl_add_u32 v13, v4, 3, v13")
    e("s_nop 15"); e("s_nop 3"); stamp(5)
    for G in range(4):
        e(f"v_cvt_pk_bf16_f32 v{128+4*G}, v{128+4*G}, v{129+4*G}")
        e(f"v_cvt_pk_bf16_f32 v{129+4*G}, v{130+4*G}, v{131+4*G}")
        e(f"buffer_store_dwordx2 v[{128+4*G}:{129+4*G}], v13, s[20:23], s37 offen offset:{16*G}")
    dump(6, 2)
    lab("K3_end"); e("s_endpgm")

def desc(name, vgpr=256):
    return f""".amdhsa_kernel {name}
  .amdhsa_next_free_vgpr {vgpr}
  .amdhsa_next_free_sgpr 102
  .amdhsa_accum_offset {vgpr}
  .amdhsa_group_segment_fixed_size 0
  .amdhsa_kernarg_size 96
  .amdhsa_user_sgpr_count 2
  .amdhsa_user_sgpr_kernarg_segment_ptr 1
  .amdhsa_system_sgpr_workgroup_id_x 1
.end_amdhsa_kernel
"""
def main():
    global STAMP; STAMP = len(sys.argv) > 3
    stages = sys.argv[2] if len(sys.argv) > 2 else "123"
    hdr = open(f"cdna_kernels/{NAME}.s.ref").read().split("; Override")[0]
    la = ""
    if "1" in stages: la += "; @launch kernel=k1_kernel grid=(240,1,1) block=(256,1,1) lds=116736\n"
    L.append('.amdgcn_target "amdgcn-amd-amdhsa--gfx950"'); L.append(".text")
    if "2" in stages: la += "; @launch kernel=k2_kernel grid=(256,1,1) block=(512,1,1) lds=98304\n"
    if "3" in stages: la += "; @launch kernel=k3_kernel grid=(224,1,1) block=(256,1,1) lds=57344\n"
    gen_k1(); gen_k2(); gen_k3()
    ds = '.section .rodata,"a"\n.p2align 6\n' + desc("k1_kernel") + ".p2align 6\n" + desc("k2_kernel") + ".p2align 6\n" + desc("k3_kernel")
    open(sys.argv[1], "w").write(hdr + la + "\n".join(L) + "\n" + ds)
main()
```

```python
import sys
NAME = "gated_mix__grouped_kv_mqa__sliding_local_dilated__prompt"
WS_QA, WS_KA, WS_VA, WS_QKB, WS_VBT, WS_OM = 0x0, 0x200000, 0x220000, 0x240000, 0x5C0000, 0x780000
WS_G = 0xB00000
WS_SIZE = 0xB20000
L = []
def e(s): L.append("    " + s)
def lab(s): L.append(s + ":")

def srd(d, lo, hi, size):
    e(f"s_mov_b32 s{d}, s{lo}"); e(f"s_and_b32 s{d+1}, s{hi}, 0xffff")
    e(f"s_mov_b32 s{d+2}, {size}"); e(f"s_mov_b32 s{d+3}, 0x00020000")

STAMP = False
def stamp(i):
    if STAMP: e(f"s_memtime s[{60+2*i}:{61+2*i}]")
def dump(n, kid):
    if not STAMP: return
    e("s_waitcnt lgkmcnt(0) vmcnt(0)"); stamp(n); e("s_waitcnt lgkmcnt(0)")
    e("s_mov_b64 exec, 1")
    e(f"s_lshl_b32 s59, s2, 6"); e(f"s_add_u32 s59, s59, {0xB02000 + kid*0x8000}")
    e("v_lshrrev_b32 v250, 6, v0"); e("s_nop 0"); e("v_readfirstlane_b32 s58, v250")
    e("s_lshl_b32 s58, s58, 15"); e("s_cmp_eq_u32 s58, 0"); e("s_cbranch_scc0 Lskip%d_%d" % (kid, len(L)))
    k = len(L) - 1
    for i in range(n+1):
        e(f"s_sub_u32 s57, s{60+2*i}, s60"); e("v_mov_b32 v251, s57"); e("v_mov_b32 v252, s59")
        e(f"buffer_store_dword v251, v252, s[16:19], 0 offen offset:{4*i}")
    lab("Lskip%d_%d" % (kid, k))
def kernel_head(name):
    L.append(f".globl {name}"); L.append(".p2align 8"); L.append(f".type {name},@function"); lab(name)

def gen_k1():
    kernel_head("k1_kernel")
    e("s_lshr_b32 s3, s2, 4"); e("s_and_b32 s33, s2, 7"); e("s_lshl_b32 s33, s33, 1"); e("s_bfe_u32 s34, s2, 0x10003"); e("s_or_b32 s33, s33, s34")
    e("s_cmp_ge_u32 s3, 15"); e("s_cbranch_scc1 K1_end"); stamp(0)
    e("s_load_dwordx8 s[36:43], s[0:1], 0")
    e("s_load_dwordx2 s[44:45], s[0:1], 48")
    e("s_load_dwordx2 s[46:47], s[0:1], 88")
    e("v_lshrrev_b32 v1, 6, v0")
    e("v_and_b32 v2, 63, v0")
    e("v_and_b32 v3, 31, v0")
    e("v_bfe_u32 v4, v0, 5, 1")
    e("s_waitcnt lgkmcnt(0)")
    srd(8, 36, 37, 2048*448*2)
    srd(16, 46, 47, WS_SIZE)
    e("s_lshl_b32 s34, s33, 7")
    e("v_lshl_add_u32 v5, v1, 5, v3"); e("v_add_u32 v5, s34, v5")
    e("s_nop 0"); e("v_readfirstlane_b32 s35, v1")
    e("s_lshl_b32 s52, s35, 5"); e("s_add_u32 s52, s52, s34"); e("s_mul_i32 s52, s52, 896")
    e("s_mul_i32 s53, s35, 29184")
    e("v_lshlrev_b32 v6, 4, v2")
    for i in range(28):
        e(f"s_add_u32 s54, s52, {i*1024}")
        e(f"buffer_load_dwordx4 v[{16+4*i}:{19+4*i}], v6, s[8:11], s54 offen")
    e("v_bfe_u32 v8, v2, 4, 1")
    e("v_bfe_u32 v9, v2, 2, 2")
    e("v_and_b32 v10, 3, v2")
    e("v_lshl_add_u32 v7, v4, 3, v9"); e("v_lshlrev_b32 v7, 6, v7")
    e("v_lshl_add_u32 v7, v8, 5, v7"); e("v_lshl_add_u32 v7, v10, 3, v7")
    e("v_lshlrev_b32 v11, 4, v0")
    e("v_lshlrev_b32 v12, 3, v0")
    e("v_add_u32 v224, 57344, v7"); e("v_add_u32 v225, 57344, v11"); e("v_add_u32 v226, 57344, v12")
    e("v_cmp_le_u32 s[30:31], 32, v2")
    for nc in range(15):
        e(f"s_cmp_eq_u32 s3, {nc}"); e(f"s_cbranch_scc1 K1_v{nc}")
    e("s_branch K1_end")
    for nc in range(15):
        lab(f"K1_v{nc}")
        if nc < 3: blocks = [("QA", 4*nc+b) for b in range(4)]
        elif nc == 3: blocks = [("QA", 12), ("QA", 13), ("KA", 0), ("VA", 0)]
        elif nc < 11: blocks = [("QKB", 4*(nc-4)+b) for b in range(4)]
        elif nc < 14: blocks = [("VB", 4*(nc-11)+b) for b in range(4)]
        else: blocks = [("VB", 12), ("VB", 13)]
        def wsetup(ty, idx):
            if ty == "QA": srd(12, 38, 39, 448*448*2); stride, col = 896, idx*32
            elif ty == "QKB": srd(12, 44, 45, 448*1344*2); stride, col = 2688, idx*32
            else: srd(12, 44, 45, 448*1344*2); stride, col = 2688, 896+idx*32
            e(f"s_movk_i32 s35, {stride}")
            e("v_lshrrev_b32 v227, 2, v0"); e("v_mul_lo_u32 v227, v227, s35")
            e("v_and_b32 v14, 3, v0"); e("v_lshl_add_u32 v227, v14, 4, v227")
            return stride, col
        for bi in range(2):
            stride, col = wsetup(*blocks[bi])
            for r in range(7):
                e(f"s_mov_b32 s35, {col*2 + r*64*stride}")
                e(f"buffer_load_dwordx4 v[{128+28*bi+4*r}:{131+28*bi+4*r}], v227, s[12:15], s35 offen")
        e("s_mov_b32 s54, 0x4924925")
        for i in range(28):
            e(f"v_add_u32 v13, {i*64}, v2"); e("v_mul_hi_u32 v14, v13, s54")
            e("v_lshlrev_b32 v13, 4, v13"); e("v_lshl_add_u32 v13, v14, 4, v13"); e("v_add_u32 v13, s53, v13")
            e(f"s_waitcnt vmcnt({41-i})")
            e(f"ds_write_b128 v13, v[{16+4*i}:{19+4*i}]")
        e("v_mul_u32_u24 v13, 912, v3"); e("v_lshl_add_u32 v13, v4, 4, v13"); e("v_add_u32 v13, s53, v13")
        e("s_waitcnt lgkmcnt(0)")
        for ks in range(28):
            e(f"ds_read_b128 v[{16+4*ks}:{19+4*ks}], v13 offset:{32*ks}")
        e("s_waitcnt lgkmcnt(0)"); e("s_barrier"); stamp(1)
        for bi in range(2):
            for r in range(7):
                e(f"s_waitcnt vmcnt({13-7*bi-r})")
                e(f"ds_write_b128 v11, v[{128+28*bi+4*r}:{131+28*bi+4*r}] offset:{bi*28672 + r*4096}")
        for bi, (ty, idx) in list(enumerate(blocks))[2:]:
            base = bi*28672
            if ty in ("QA", "QKB", "VB"):
                if ty == "QA": srd(12, 38, 39, 448*448*2); stride, col = 896, idx*32
                elif ty == "QKB": srd(12, 44, 45, 448*1344*2); stride, col = 2688, idx*32
                else: srd(12, 44, 45, 448*1344*2); stride, col = 2688, 896+idx*32
                e(f"s_movk_i32 s35, {stride}")
                e("v_lshrrev_b32 v13, 2, v0"); e("v_mul_lo_u32 v13, v13, s35")
                e("v_and_b32 v14, 3, v0"); e("v_lshl_add_u32 v13, v14, 4, v13")
                for r in range(7):
                    e(f"s_mov_b32 s35, {col*2 + r*64*stride}")
                    e(f"buffer_load_dwordx4 v[{128+4*r}:{131+4*r}], v13, s[12:15], s35 offen")
                for r in range(7):
                    e(f"s_waitcnt vmcnt({6-r})")
                    e(f"ds_write_b128 {'v11' if bi<2 else 'v225'}, v[{128+4*r}:{131+4*r}] offset:{(base%57344) + r*4096}")
            else:
                if ty == "KA": srd(12, 40, 41, 448*28*2)
                else: srd(12, 42, 43, 448*28*2)
                e("v_lshrrev_b32 v13, 3, v0"); e("v_mul_u32_u24 v13, 56, v13")
                e("v_and_b32 v14, 7, v0"); e("v_lshl_add_u32 v13, v14, 3, v13")
                e("v_mov_b32 v15, 0x7fffff00")
                e("v_cmp_eq_u32 vcc, 7, v14"); e("s_nop 1"); e("v_cndmask_b32 v13, v13, v15, vcc")
                for r in range(14):
                    e(f"s_movk_i32 s35, {r*32*56}")
                    e(f"buffer_load_dwordx2 v[{128+2*r}:{129+2*r}], v13, s[12:15], s35 offen")
                if ty == "KA":
                    e("s_load_dwordx2 s[48:49], s[0:1], 64"); e("s_waitcnt lgkmcnt(0)")
                    srd(20, 48, 49, 896)
                    e("v_lshrrev_b32 v15, 3, v0"); e("v_lshlrev_b32 v15, 1, v15")
                    e("s_and_saveexec_b64 s[50:51], vcc")
                    for r in range(14):
                        e(f"buffer_load_ushort v{128+2*r}, v15, s[20:23], 0 offen offset:{r*64}")
                    e("s_mov_b64 exec, s[50:51]")
                    e("s_waitcnt vmcnt(0)")
                for r in range(14):
                    e(f"s_waitcnt vmcnt({13-r})")
                    e(f"ds_write_b64 {'v12' if bi<2 else 'v226'}, v[{128+2*r}:{129+2*r}] offset:{(base%57344) + r*2048}")
        e("s_waitcnt lgkmcnt(0)"); e("s_barrier"); stamp(2)
        nb = len(blocks)
        def rd(ks, buf):
            for bi in range(nb):
                r0 = 192 + buf*16 + bi*4
                ar = 'v7' if bi<2 else 'v224'
                e(f"ds_read_b64_tr_b16 v[{r0}:{r0+1}], {ar} offset:{(bi%2)*28672 + ks*1024}")
                e(f"ds_read_b64_tr_b16 v[{r0+2}:{r0+3}], {ar} offset:{(bi%2)*28672 + ks*1024 + 256}")
        rd(0, 0)
        for ks in range(28):
            if ks < 27:
                rd(ks+1, (ks+1) & 1); e(f"s_waitcnt lgkmcnt({2*nb})")
            else: e("s_waitcnt lgkmcnt(0)")
            for bi, (ty, idx) in enumerate(blocks):
                w = f"v[{192+(ks&1)*16+bi*4}:{195+(ks&1)*16+bi*4}]"; x = f"v[{16+4*ks}:{19+4*ks}]"
                acc = f"v[{128+16*bi}:{143+16*bi}]"
                c = acc if ks else "0"
                if ty in ("VA", "VB"): e(f"v_mfma_f32_32x32x16_bf16 {acc}, {x}, {w}, {c}")
                else: e(f"v_mfma_f32_32x32x16_bf16 {acc}, {w}, {x}, {c}")
        e("s_nop 15"); e("s_nop 3"); stamp(3)
        for bi, (ty, idx) in enumerate(blocks):
            a = 128+16*bi
            if ty == "QA":
                e("v_lshrrev_b32 v13, 1, v5"); e("v_lshlrev_b32 v13, 11, v13")
                e("v_and_b32 v14, 1, v5"); e("v_lshl_add_u32 v13, v14, 8, v13")
            elif ty == "KA":
                e("v_lshrrev_b32 v13, 5, v5"); e("v_lshlrev_b32 v13, 11, v13")
                e("v_lshl_add_u32 v13, v3, 4, v13"); e("v_lshl_add_u32 v13, v4, 3, v13")
                e(f"v_add_u32 v13, {WS_KA}, v13")
                e(f"v_lshlrev_b32 v14, 2, v5"); e(f"v_add_u32 v14, {WS_G}, v14")
                e("s_mov_b64 s[50:51], exec"); e("s_mov_b64 exec, s[30:31]")
                e(f"buffer_store_dword v{a+12}, v14, s[16:19], 0 offen")
                e(f"v_mov_b32 v{a+12}, 0")
                e("s_mov_b64 exec, s[50:51]")
            elif ty == "VA":
                e("v_lshrrev_b32 v13, 5, v5"); e("v_lshlrev_b32 v13, 11, v13")
                e("v_lshl_add_u32 v13, v2, 4, v13")
                e(f"v_add_u32 v13, {WS_VA}, v13")
                e("v_cmp_eq_u32 vcc, 28, v3"); e("s_nop 1")
                for r in range(16): e(f"v_cndmask_b32 v{a+r}, v{a+r}, 1.0, vcc")
            elif ty == "QKB":
                e("s_movk_i32 s35, 1792"); e("v_mul_lo_u32 v13, v5, s35"); e("v_lshl_add_u32 v13, v4, 3, v13")
                e(f"v_add_u32 v13, {WS_QKB + idx*64}, v13")
            else:
                e(f"v_add_u32 v13, {idx*32}, v3"); e("v_lshlrev_b32 v13, 12, v13")
                e("v_sub_u32 v14, v5, v3"); e("v_lshl_add_u32 v13, v14, 1, v13"); e("v_lshl_add_u32 v13, v4, 3, v13")
                e(f"v_add_u32 v13, {WS_VBT}, v13")
            if ty == "QA":
                e(f"s_mov_b32 s35, {fbits(CSC)}")
                for r in range(16): e(f"v_mul_f32 v{a+r}, s35, v{a+r}")
            for G in range(4):
                e(f"v_cvt_pk_bf16_f32 v{a+4*G}, v{a+4*G}, v{a+4*G+1}")
                e(f"v_cvt_pk_bf16_f32 v{a+4*G+1}, v{a+4*G+2}, v{a+4*G+3}")
                if ty == "QA":
                    def cst(n):
                        h, d = n//28, n % 28
                        return (d//16)*1024 + ((d//8) % 2)*512 + h*16 + (d % 8)*2
                    n = idx*32 + 8*G
                    e(f"v_mov_b32 v14, {cst(n)}"); e(f"v_mov_b32 v15, {cst(n+4)}")
                    e("v_cndmask_b32 v14, v14, v15, s[30:31]"); e("v_add_u32 v14, v14, v13")
                    e(f"buffer_store_dwordx2 v[{a+4*G}:{a+4*G+1}], v14, s[16:19], 0 offen")
                else:
                    off = {"KA": (G//2)*1024 + (G % 2)*512, "VA": (G//2)*1024 + (G % 2)*8, "QKB": 16*G, "VB": 16*G}[ty]
                    e(f"buffer_store_dwordx2 v[{a+4*G}:{a+4*G+1}], v13, s[16:19], 0 offen offset:{off}")
        dump(4, 0)
        e("s_endpgm")
    lab("K1_end"); e("s_endpgm")

import math
CSC = 28 ** -0.5 * math.log2(math.e)
import struct
def fbits(f): return "0x%08x" % struct.unpack("<I", struct.pack("<f", f))[0]
def halfmax(v, t):
    e(f"v_mov_b32 v{t}, v{v}"); e("s_nop 1"); e(f"v_permlane32_swap_b32 v{v}, v{t}"); e("s_nop 1")
def gen_k2():
    kernel_head("k2_kernel")
    e("s_cmp_ge_u32 s2, 256"); e("s_cbranch_scc1 K2_end"); stamp(0)
    e("s_load_dwordx2 s[46:47], s[0:1], 88")
    e("v_lshrrev_b32 v1, 6, v0"); e("v_and_b32 v2, 63, v0"); e("v_and_b32 v3, 31, v0"); e("v_bfe_u32 v4, v0, 5, 1")
    e("s_nop 0"); e("v_readfirstlane_b32 s4, v1")
    e("s_waitcnt lgkmcnt(0)")
    srd(16, 46, 47, WS_SIZE)
    e("s_and_b32 s5, s4, 3"); e("s_lshr_b32 s6, s4, 2")
    e("s_lshl_b32 s7, s2, 2"); e("s_add_u32 s7, s7, s5")
    e(f"s_mov_b32 s3, {fbits(CSC)}")
    e("v_cmp_le_u32 s[30:31], 32, v2")
    e("v_lshlrev_b32 v5, 4, v2")
    e("v_lshlrev_b32 v6, 4, v0")
    e("s_lshl_b32 s8, s7, 11")
    e("buffer_load_dwordx4 v[8:11], v5, s[16:19], s8 offen")
    e("buffer_load_dwordx4 v[12:15], v5, s[16:19], s8 offen offset:1024")
    def stage_load(c):
        for p in range(4):
            off = (WS_KA if p % 2 == 0 else WS_VA) + (p//2)*65536 + c*8192
            e(f"s_mov_b32 s9, {off}")
            e(f"buffer_load_dwordx4 v[{212+4*p}:{215+4*p}], v6, s[16:19], s9 offen")
    def stage_write(buf):
        for p in range(4):
            e(f"ds_write_b128 {'v17' if buf == 2 else 'v6'}, v[{212+4*p}:{215+4*p}] offset:{(buf%2)*32768 + p*8192}")
    stage_load(0)
    e("s_waitcnt vmcnt(0)")
    e("v_cndmask_b32 v14, v14, 0, s[30:31]"); e("v_cndmask_b32 v15, v15, 0, s[30:31]")
    stage_write(0)
    stage_load(1)
    for r in range(16): e(f"v_mov_b32 v{192+r}, 0")
    for r in range(16): e(f"v_mov_b32 v{236+r}, 0")
    e("s_lshl_b32 s10, s6, 14"); e("v_add_u32 v7, s10, v5")
    e("v_add_u32 v16, 0x10000, v7"); e("v_add_u32 v17, 0x10000, v6")
    e("s_waitcnt vmcnt(0)"); stage_write(1)
    e("s_waitcnt lgkmcnt(0)"); e("s_barrier"); stamp(1)
    SB = [32, 96]
    def rdK(c):
        b = c % 3; ar = "v16" if b == 2 else "v7"
        for t in range(4):
            for st in range(2):
                e(f"ds_read_b128 v[{160+8*t+4*st}:{163+8*t+4*st}], {ar} offset:{(b%2)*32768 + t*2048 + st*1024}")
    def qk(c, t, st):
        S = f"v[{SB[c&1]+16*t}:{SB[c&1]+15+16*t}]"
        e(f"v_mfma_f32_32x32x16_bf16 {S}, v[{160+8*t+4*st}:{163+8*t+4*st}], v[{8+4*st}:{11+4*st}], {S if st else 'v[236:251]'}")
    rdK(0); e("s_waitcnt lgkmcnt(0)")
    for t in range(4): qk(0, t, 0); qk(0, t, 1)
    for c in range(8):
        b = c % 3; ar = "v16" if b == 2 else "v7"; S0 = SB[c & 1]
        if c == 1: stamp(2)
        if c == 2: stamp(3)
        if c < 6: stage_load(c+2)
        if c < 7: rdK(c+1)
        mf = [(t, st) for t in range(4) for st in range(2)] if c < 7 else []
        e("s_nop 7")
        e(f"v_max3_f32 v209, v{S0}, v{S0+1}, v{S0+2}")
        for r in range(3, 63, 2): e(f"v_max3_f32 v209, v209, v{S0+r}, v{S0+r+1}")
        e(f"v_max_f32 v209, v209, v{S0+63}")
        halfmax(209, 210)
        e("v_max_f32 v209, v209, v210")
        if c > 0:
            e("v_cmp_lt_f32 vcc, 8.0, v209"); e(f"s_cbranch_vccz K2_back{c}")
            e("v_max_f32 v209, 0, v209")
        e("v_sub_f32 v210, 0, v209"); e("v_exp_f32 v210, v210")
        for r in range(64): e(f"v_sub_f32 v{S0+r}, v{S0+r}, v209")
        for r in range(16): e(f"v_mul_f32 v{192+r}, v{192+r}, v210")
        for r in range(16): e(f"v_sub_f32 v{236+r}, v{236+r}, v209")
        lab(f"K2_back{c}")
        if mf: e("s_waitcnt lgkmcnt(0)")
        VB = [228, 18]
        def rdV(t):
            e(f"ds_read_b128 v[{VB[t&1]}:{VB[t&1]+3}], {ar} offset:{(b%2)*32768 + 8192 + t*2048}")
            e(f"ds_read_b128 v[{VB[t&1]+4}:{VB[t&1]+7}], {ar} offset:{(b%2)*32768 + 8192 + t*2048 + 1024}")
        rdV(0)
        for t in range(4):
            for r in range(16):
                e(f"v_exp_f32 v{S0+16*t+r}, v{S0+16*t+r}")
                if r in (0, 8) and mf: qk(c+1, *mf.pop(0))
            for r in range(8): e(f"v_cvt_pk_bf16_f32 v{S0+16*t+r}, v{S0+16*t+2*r}, v{S0+16*t+2*r+1}")
            e("s_waitcnt lgkmcnt(0)")
            if t < 3: rdV(t+1)
            e(f"v_mfma_f32_32x32x16_bf16 v[192:207], v[{VB[t&1]}:{VB[t&1]+3}], v[{S0+16*t}:{S0+16*t+3}], v[192:207]")
            e(f"v_mfma_f32_32x32x16_bf16 v[192:207], v[{VB[t&1]+4}:{VB[t&1]+7}], v[{S0+16*t+4}:{S0+16*t+7}], v[192:207]")
        if c < 6:
            e("s_waitcnt vmcnt(0)"); stage_write((c+2) % 3)
        e("s_waitcnt lgkmcnt(0)"); e("s_barrier")
    e("s_nop 15"); stamp(4); e("v_sub_f32 v208, 0, v236")
    e("s_cmp_ge_u32 s4, 4"); e("s_cbranch_scc1 K2_hi")
    e("s_barrier")
    e("s_mul_i32 s10, s5, 4352"); e("v_lshlrev_b32 v7, 2, v2"); e("v_add_u32 v7, s10, v7")
    e("ds_read_b32 v32, v7 offset:0")
    for r in range(16): e(f"ds_read_b32 v{33+r}, v7 offset:{256*(r+1)}")
    e("s_lshl_b32 s10, s7, 1"); e("v_lshrrev_b32 v50, 4, v3"); e("v_add_u32 v50, s10, v50")
    e(f"v_lshlrev_b32 v51, 2, v50"); e(f"v_add_u32 v51, {WS_G}, v51")
    e("buffer_load_dword v52, v51, s[16:19], 0 offen")
    e("s_waitcnt lgkmcnt(0) vmcnt(0)")
    e("v_max_f32 v53, v208, v32")
    e("v_sub_f32 v54, v208, v53"); e("v_sub_f32 v55, v32, v53")
    e("v_exp_f32 v54, v54"); e("v_exp_f32 v55, v55"); e("s_nop 0")
    for r in range(16):
        e(f"v_mul_f32 v{192+r}, v{192+r}, v54"); e(f"v_fmac_f32 v{192+r}, v{33+r}, v55")
    e("v_mov_b32 v56, v204"); halfmax(56, 57)
    e(f"v_mul_f32 v52, {fbits(-math.log2(math.e))}, v52"); e("v_exp_f32 v52, v52"); e("s_nop 0")
    e("v_add_f32 v52, 1.0, v52"); e("v_mul_f32 v52, v52, v57"); e("v_rcp_f32 v52, v52"); e("s_nop 0")
    for r in range(16): e(f"v_mul_f32 v{192+r}, v{192+r}, v52")
    e("v_lshrrev_b32 v58, 5, v50"); e("s_mov_b32 s10, 57344"); e("v_mul_lo_u32 v58, v58, s10")
    e("v_and_b32 v59, 31, v50"); e("v_lshl_add_u32 v58, v59, 4, v58"); e(f"v_add_u32 v58, {WS_OM}, v58")
    e("v_and_b32 v59, 15, v3"); e("v_mul_u32_u24 v59, 28, v59"); e("v_lshl_add_u32 v59, v4, 2, v59")
    for G in range(4):
        e(f"v_cvt_pk_bf16_f32 v{192+4*G}, v{192+4*G}, v{193+4*G}")
        e(f"v_cvt_pk_bf16_f32 v{193+4*G}, v{194+4*G}, v{195+4*G}")
        e(f"v_add_u32 v60, {8*G}, v59")
        e("v_lshrrev_b32 v61, 3, v60"); e("v_lshlrev_b32 v61, 9, v61"); e("v_and_b32 v60, 7, v60")
        e("v_lshl_add_u32 v61, v60, 1, v61"); e("v_add_u32 v61, v61, v58")
        if G == 3: e("s_andn2_b64 exec, exec, s[30:31]")
        e(f"buffer_store_dwordx2 v[{192+4*G}:{193+4*G}], v61, s[16:19], 0 offen")
    dump(5, 1)
    e("s_endpgm")
    lab("K2_hi")
    e("s_mul_i32 s10, s5, 4352"); e("v_lshlrev_b32 v7, 2, v2"); e("v_add_u32 v7, s10, v7")
    e("ds_write_b32 v7, v208 offset:0")
    for r in range(16): e(f"ds_write_b32 v7, v{192+r} offset:{256*(r+1)}")
    e("s_waitcnt lgkmcnt(0)"); e("s_barrier")
    e("s_and_b32 s10, s2, 3"); e("s_lshl_b32 s10, s10, 2"); e("s_add_u32 s10, s10, s5")
    e("s_lshr_b32 s11, s2, 2"); e("s_lshl_b32 s12, s11, 5")
    e("s_mul_i32 s13, s10, 56")
    e("v_add_u32 v230, s12, v3")
    e("s_movk_i32 s14, 1792"); e("v_mul_lo_u32 v231, v230, s14"); e("v_lshl_add_u32 v231, v4, 4, v231")
    e(f"s_add_u32 s15, s13, {WS_QKB}")
    e("buffer_load_dwordx4 v[8:11], v231, s[16:19], s15 offen")
    e("buffer_load_dwordx4 v[12:15], v231, s[16:19], s15 offen offset:32")
    e(f"s_add_u32 s15, s13, {WS_QKB + 896 - 32*1792}")
    e("buffer_load_dwordx4 v[96:99], v231, s[16:19], s15 offen")
    e("buffer_load_dwordx4 v[100:103], v231, s[16:19], s15 offen offset:32")
    e(f"s_add_u32 s15, s13, {WS_QKB + 896}")
    e("buffer_load_dwordx4 v[104:107], v231, s[16:19], s15 offen")
    e("buffer_load_dwordx4 v[108:111], v231, s[16:19], s15 offen offset:32")
    e("s_mul_i32 s15, s10, 28"); e("v_add_u32 v232, s15, v3"); e("v_lshlrev_b32 v232, 12, v232")
    e("v_lshl_add_u32 v232, v4, 3, v232"); e("s_lshl_b32 s15, s12, 1"); e("v_add_u32 v232, s15, v232")
    e(f"s_mov_b32 s15, {WS_VBT - 64}")
    for kt in range(2):
        for st in range(2):
            r0 = 128 + 8*kt + 4*st
            e(f"buffer_load_dwordx2 v[{r0}:{r0+1}], v232, s[16:19], s15 offen offset:{kt*64+st*32}")
            e(f"buffer_load_dwordx2 v[{r0+2}:{r0+3}], v232, s[16:19], s15 offen offset:{kt*64+st*32+16}")
    e(f"v_lshlrev_b32 v233, 2, v230"); e(f"v_add_u32 v233, {WS_G}, v233")
    e("buffer_load_dword v234, v233, s[16:19], 0 offen")
    e("s_waitcnt vmcnt(0)")
    e("v_cndmask_b32 v14, v14, 0, s[30:31]"); e("v_cndmask_b32 v15, v15, 0, s[30:31]"); e("s_nop 1")
    for kt in range(2):
        S = f"v[{32+16*kt}:{47+16*kt}]"
        e(f"v_mfma_f32_32x32x16_bf16 {S}, v[{96+8*kt}:{99+8*kt}], v[8:11], 0")
        e(f"v_mfma_f32_32x32x16_bf16 {S}, v[{100+8*kt}:{103+8*kt}], v[12:15], {S}")
    e("v_lshlrev_b32 v235, 2, v4"); e("v_sub_u32 v235, v3, v235"); e("v_add_u32 v235, 32, v235")
    e("s_cmp_eq_u32 s11, 0"); e("s_cselect_b32 s15, 0x1000, 0"); e("v_add_u32 v236, s15, v235")
    e("s_nop 15")
    for kt in range(2):
        for r in range(16):
            kk = kt*32 + 8*(r//4) + r % 4
            e(f"v_subrev_u32 v237, {kk}, v{236 if kt == 0 else 235}"); e("v_and_b32 v237, 0xfffffff1, v237")
            e("v_cmp_eq_u32 vcc, 0, v237"); e("v_mov_b32 v238, 0xf149f2ca"); e("s_nop 0")
            e(f"v_cndmask_b32 v{32+16*kt+r}, v238, v{32+16*kt+r}, vcc")
    e("v_max3_f32 v209, v32, v33, v34")
    for r in range(35, 63, 2): e(f"v_max3_f32 v209, v209, v{r}, v{r+1}")
    e("v_max_f32 v209, v209, v63")
    halfmax(209, 210); e("v_max_f32 v209, v209, v210"); e("v_mul_f32 v209, s3, v209")
    for r in range(32, 64): e(f"v_fma_f32 v{r}, v{r}, s3, -v209")
    for r in range(32, 64): e(f"v_exp_f32 v{r}, v{r}")
    e("s_nop 0")
    e("v_add_f32 v209, v32, v33")
    for r in range(34, 64): e(f"v_add_f32 v209, v209, v{r}")
    halfmax(209, 210); e("v_add_f32 v209, v209, v210")
    for r in range(16): e(f"v_cvt_pk_bf16_f32 v{160+r}, v{32+2*r}, v{33+2*r}")
    e("s_nop 1")
    for kt in range(2):
        for st in range(2):
            c = "0" if kt+st == 0 else "v[192:207]"
            e(f"v_mfma_f32_32x32x16_bf16 v[192:207], v[{128+8*kt+4*st}:{131+8*kt+4*st}], v[{160+8*kt+4*st}:{163+8*kt+4*st}], {c}")
    e(f"v_mul_f32 v234, {fbits(math.log2(math.e))}, v234"); e("v_exp_f32 v234, v234"); e("s_nop 0")
    e("v_add_f32 v234, 1.0, v234"); e("v_mul_f32 v234, v234, v209"); e("v_rcp_f32 v234, v234")
    e("s_mul_i32 s15, s11, 57344"); e(f"s_add_u32 s15, s15, {WS_OM}")
    e("v_lshlrev_b32 v238, 4, v3")
    e("s_mul_i32 s13, s10, 28"); e("s_add_u32 s13, s13, 448"); e("v_lshl_add_u32 v237, v4, 2, s13")
    e("s_nop 15")
    for r in range(16): e(f"v_mul_f32 v{192+r}, v{192+r}, v234")
    for G in range(4):
        e(f"v_cvt_pk_bf16_f32 v{192+4*G}, v{192+4*G}, v{193+4*G}")
        e(f"v_cvt_pk_bf16_f32 v{193+4*G}, v{194+4*G}, v{195+4*G}")
        e(f"v_add_u32 v236, {8*G}, v237")
        e("v_lshrrev_b32 v235, 3, v236"); e("v_lshlrev_b32 v235, 9, v235"); e("v_and_b32 v236, 7, v236")
        e("v_lshl_add_u32 v235, v236, 1, v235"); e("v_add_u32 v235, v235, v238")
        if G == 3: e("s_andn2_b64 exec, exec, s[30:31]")
        e(f"buffer_store_dwordx2 v[{192+4*G}:{193+4*G}], v235, s[16:19], s15 offen")
    lab("K2_end"); e("s_endpgm")

def gen_k3():
    kernel_head("k3_kernel")
    e("s_lshr_b32 s3, s2, 4"); e("s_and_b32 s33, s2, 7"); e("s_lshl_b32 s33, s33, 1"); e("s_bfe_u32 s34, s2, 0x10003"); e("s_or_b32 s33, s33, s34")
    e("s_cmp_ge_u32 s3, 14"); e("s_cbranch_scc1 K3_end"); stamp(0)
    e("s_load_dwordx2 s[38:39], s[0:1], 32"); e("s_load_dwordx2 s[40:41], s[0:1], 56")
    e("s_load_dwordx2 s[42:43], s[0:1], 72"); e("s_load_dwordx2 s[46:47], s[0:1], 88")
    e("v_lshrrev_b32 v1, 6, v0"); e("v_and_b32 v2, 63, v0"); e("v_and_b32 v3, 31, v0"); e("v_bfe_u32 v4, v0, 5, 1")
    e("s_waitcnt lgkmcnt(0)")
    srd(16, 46, 47, WS_SIZE); srd(20, 42, 43, 2048*448*2)
    e("s_lshl_b32 s34, s33, 7"); e("v_lshl_add_u32 v5, v1, 5, v3"); e("v_add_u32 v5, s34, v5")
    e("s_mov_b32 s35, 57344"); e("v_lshrrev_b32 v6, 5, v5"); e("v_mul_lo_u32 v6, v6, s35"); e("v_lshl_add_u32 v6, v2, 4, v6")
    for ks in range(28):
        e(f"s_mov_b32 s36, {WS_OM + 1024*ks}")
        e(f"buffer_load_dwordx4 v[{16+4*ks}:{19+4*ks}], v6, s[16:19], s36 offen")
    e("v_bfe_u32 v8, v2, 4, 1"); e("v_bfe_u32 v9, v2, 2, 2"); e("v_and_b32 v10, 3, v2")
    e("v_lshl_add_u32 v7, v4, 3, v9"); e("v_lshlrev_b32 v7, 6, v7")
    e("v_lshl_add_u32 v7, v8, 5, v7"); e("v_lshl_add_u32 v7, v10, 3, v7")
    e("v_lshlrev_b32 v11, 4, v0")
    e("s_movk_i32 s35, 896"); e("v_lshrrev_b32 v13, 2, v0"); e("v_mul_lo_u32 v13, v13, s35")
    e("v_and_b32 v14, 3, v0"); e("v_lshl_add_u32 v13, v14, 4, v13")
    e("s_lshl_b32 s37, s3, 6")
    for hf in range(2):
        srd(12, 38+2*hf, 39+2*hf, 448*448*2)
        for r in range(7):
            e(f"s_add_u32 s35, s37, {r*64*896}")
            e(f"buffer_load_dwordx4 v[{144+28*hf+4*r}:{147+28*hf+4*r}], v13, s[12:15], s35 offen")
    for hf in range(2):
        for r in range(7):
            e(f"s_waitcnt vmcnt({13-7*hf-r})")
            e(f"ds_write_b128 v11, v[{144+28*hf+4*r}:{147+28*hf+4*r}] offset:{hf*28672 + r*4096}")
    e("s_waitcnt lgkmcnt(0)"); stamp(1); e("s_barrier"); stamp(2)
    def rd(ks, buf):
        r0 = 208 + buf*4
        e(f"ds_read_b64_tr_b16 v[{r0}:{r0+1}], v7 offset:{ks*1024}")
        e(f"ds_read_b64_tr_b16 v[{r0+2}:{r0+3}], v7 offset:{ks*1024 + 256}")
    rd(0, 0)
    for ks in range(56):
        if ks == 28: stamp(3); e("s_waitcnt vmcnt(0)"); stamp(4)
        if ks < 55: rd(ks+1, (ks+1) & 1); e("s_waitcnt lgkmcnt(2)")
        else: e("s_waitcnt lgkmcnt(0)")
        k2 = ks % 28
        e(f"v_mfma_f32_32x32x16_bf16 v[128:143], v[{208+(ks&1)*4}:{211+(ks&1)*4}], v[{16+4*k2}:{19+4*k2}], {'v[128:143]' if ks else '0'}")
        if ks < 28:
            e(f"s_mov_b32 s36, {WS_OM + 1024*(28+ks)}")
            e(f"buffer_load_dwordx4 v[{16+4*ks}:{19+4*ks}], v6, s[16:19], s36 offen")
    e("s_movk_i32 s35, 896"); e("v_mul_lo_u32 v13, v5, s35"); e("v_lshl_add_u32 v13, v4, 3, v13")
    e("s_nop 15"); e("s_nop 3"); stamp(5)
    for G in range(4):
        e(f"v_cvt_pk_bf16_f32 v{128+4*G}, v{128+4*G}, v{129+4*G}")
        e(f"v_cvt_pk_bf16_f32 v{129+4*G}, v{130+4*G}, v{131+4*G}")
        e(f"buffer_store_dwordx2 v[{128+4*G}:{129+4*G}], v13, s[20:23], s37 offen offset:{16*G}")
    dump(6, 2)
    lab("K3_end"); e("s_endpgm")

def desc(name, vgpr=256):
    return f""".amdhsa_kernel {name}
  .amdhsa_next_free_vgpr {vgpr}
  .amdhsa_next_free_sgpr 102
  .amdhsa_accum_offset {vgpr}
  .amdhsa_group_segment_fixed_size 0
  .amdhsa_kernarg_size 96
  .amdhsa_user_sgpr_count 2
  .amdhsa_user_sgpr_kernarg_segment_ptr 1
  .amdhsa_system_sgpr_workgroup_id_x 1
.end_amdhsa_kernel
"""
def main():
    global STAMP; STAMP = len(sys.argv) > 3
    stages = sys.argv[2] if len(sys.argv) > 2 else "123"
    hdr = open(f"cdna_kernels/{NAME}.s.ref").read().split("; Override")[0]
    la = ""
    if "1" in stages: la += "; @launch kernel=k1_kernel grid=(240,1,1) block=(256,1,1) lds=116736\n"
    L.append('.amdgcn_target "amdgcn-amd-amdhsa--gfx950"'); L.append(".text")
    if "2" in stages: la += "; @launch kernel=k2_kernel grid=(256,1,1) block=(512,1,1) lds=98304\n"
    if "3" in stages: la += "; @launch kernel=k3_kernel grid=(224,1,1) block=(256,1,1) lds=57344\n"
    gen_k1(); gen_k2(); gen_k3()
    ds = '.section .rodata,"a"\n.p2align 6\n' + desc("k1_kernel") + ".p2align 6\n" + desc("k2_kernel") + ".p2align 6\n" + desc("k3_kernel")
    open(sys.argv[1], "w").write(hdr + la + "\n".join(L) + "\n" + ds)
main()
```
